```python
import torch

def _softmax(x, axis=-1):
    return torch.softmax(x, dim=axis)
def _gelu(x):
    return torch.nn.functional.gelu(x, approximate="tanh")
def _silu(x):
    return torch.nn.functional.silu(x)
def _sigmoid(x):
    return torch.sigmoid(x)
def _layernorm(x, axis=-1, eps=1e-5):
    m = x.mean(dim=axis, keepdim=True)
    v = x.var(dim=axis, keepdim=True, unbiased=False)
    return (x - m) / torch.sqrt(v + eps)
def _scatter_add(tgt, idx, src, axis=0):
    return tgt.clone().index_add_(axis, idx, src)
def _segment_sum(src, seg, n):
    out = torch.zeros((n,) + src.shape[1:], dtype=src.dtype)
    return out.index_add_(0, seg, src)
def _pad(x, pw):
    flat = tuple(v for pair in reversed(pw) for v in pair)
    return torch.nn.functional.pad(x, flat)

kernel_name = 'standalone__convnext_block__vision'

def setup_inputs():

    _w = (lambda a: (lambda t: t.to(torch.bfloat16) if t.is_floating_point() else t)(torch.as_tensor(a)))
    H = W = 224
    C = 96
    return {
        "x": _w((lambda *s: torch.randn(*s, dtype=torch.bfloat16) * 0.05)(1, H, W, C)),
        "dw": _w((lambda *s: torch.randn(*s, dtype=torch.bfloat16) * 0.05)(7, 7, C)),
        "w1": _w((lambda *s: torch.randn(*s, dtype=torch.bfloat16) * 0.05)(C, 4 * C)),
        "w2": _w((lambda *s: torch.randn(*s, dtype=torch.bfloat16) * 0.05)(4 * C, C)),
    }

def reference(x, dw, w1, w2):
    B, H, W, C = x.shape
    pad = 3
    xp = _pad(x, ((0,0),(pad,pad),(pad,pad),(0,0)))
    out = torch.zeros_like(x)
    for i in range(7):
        for j in range(7):
            out = out + xp[:, i:i+H, j:j+W, :] * dw[i, j][None, None, None, :]
    h = _layernorm(out, axis=-1)
    return x + _gelu(h @ w1) @ w2
```

```python
import re

TRANS = ("v_exp_f32","v_log_f32","v_rcp_f32","v_rsq_f32","v_sqrt_f32","v_sin_f32","v_cos_f32",
         "v_exp_f16","v_rcp_f16","v_rsq_f16","v_log_f16")

def parse_reg(tok):
    tok = tok.strip()
    tok = tok.lstrip('-').strip('|')
    m = re.fullmatch(r'([vsa])(\d+)', tok)
    if m: return {(m.group(1), int(m.group(2)))}
    m = re.fullmatch(r'([vsa])\[(\d+):(\d+)\]', tok)
    if m: return {(m.group(1), i) for i in range(int(m.group(2)), int(m.group(3))+1)}
    if tok in ('vcc','vcc_lo','vcc_hi'): return {('s','vcc')}
    if tok in ('exec','exec_lo','exec_hi'): return {('s','exec')}
    if tok == 'm0': return {('s','m0')}
    return set()

class Ins:
    __slots__=('text','op','dst','src','cls','passes','srcC','srcAB','states','lds_dma','wide_store','sdata')
    def __init__(self, text):
        self.text = text
        t = text.split(';')[0].strip()
        parts = t.split(None,1)
        op = parts[0]; self.op = op
        rest = parts[1] if len(parts)>1 else ''
        ops = [o.strip() for o in re.split(r',(?![^\[]*\])', rest)] if rest else []
        clean=[]
        for o in ops:
            clean.append(o.split()[0] if o else o)
        mods = rest
        self.dst=set(); self.src=set(); self.cls='other'; self.passes=0; self.srcC=set(); self.srcAB=set()
        self.states=1; self.lds_dma=False; self.wide_store=False; self.sdata=set()
        R=[parse_reg(c) for c in clean]
        if op=='s_nop':
            self.states=int(clean[0])+1; self.cls='nop'
        elif op.startswith('v_mfma') or op.startswith('v_smfmac'):
            self.cls='mfma'; self.dst=R[0]; self.srcAB=R[1]|R[2]; self.srcC=R[3]; self.src=self.srcAB|self.srcC
            self.passes = 8 if '32x32' in op else 4
        elif op.startswith('v_cmp'):
            self.cls='valu'; self.dst=R[0]; self.src=set().union(*R[1:])
        elif op.startswith('v_permlane') and 'swap' in op:
            self.cls='valu'; self.dst=R[0]|R[1]; self.src=R[0]|R[1]
        elif op.startswith('v_'):
            self.cls='valu'; self.dst=R[0]; self.src=set().union(*R[1:]) if len(R)>1 else set()
            if op.startswith('v_cndmask') and len(R)==3: self.src|={('s','vcc')}
            if op.startswith(('v_fmac','v_dot2c','v_pk_fmac')) or 'UNUSED_PRESERVE' in mods: self.src|=R[0]
            if op.startswith(('v_add_co','v_sub_co')): self.dst|=R[1]; self.src=set().union(*R[2:])
        elif op.startswith('ds_read') or op.startswith('ds_bpermute') or op.startswith('ds_permute') or op.startswith('ds_swizzle'):
            self.cls='ds'; self.dst=R[0]; self.src=set().union(*R[1:])
        elif op.startswith('ds_'):
            self.cls='ds'; self.src=set().union(*R)
        elif op.startswith('buffer_load') or op.startswith('global_load'):
            self.cls='vmem'
            if re.search(r'\blds\b', mods) or '_lds_' in op:
                self.lds_dma=True; self.src=set().union(*R)|{('s','m0')}
            else:
                self.dst=R[0]; self.src=set().union(*R[1:])
        elif op.startswith('buffer_store') or op.startswith('global_store') or op.startswith('buffer_atomic'):
            self.cls='vmem'; self.src=set().union(*R)
            if 'x4' in op or 'x3' in op:
                self.wide_store=True; self.sdata = R[0] if op.startswith('buffer') else R[1]
        elif op.startswith('s_'):
            self.cls='salu'
            if op.startswith(('s_cmp','s_cbranch','s_branch','s_waitcnt','s_barrier','s_endpgm','s_setprio','s_sleep')):
                self.src=set().union(*R) if R else set()
            else:
                self.dst=R[0] if R else set(); self.src=set().union(*R[1:]) if len(R)>1 else set()
                if 'saveexec' in op: self.dst|={('s','exec')}

def need(p, c):
    n=0
    pv = {r for r in p.dst if r[0] in 'va'}
    ps = {r for r in p.dst if r[0]=='s'}
    if p.cls=='valu':
        isdot = p.op.startswith('v_dot')
        if c.cls=='mfma' and pv & c.src: n=max(n,3 if isdot else 2)
        if c.cls=='mfma' and ('s','exec') in ps: n=max(n,4)
        if c.cls=='valu':
            if c.op.startswith(('v_readfirstlane','v_readlane')) and pv & c.src: n=max(n,1)
            if c.op.startswith('v_permlane') and pv & c.src: n=max(n,2)
            if ('dpp' in c.text or 'row_' in c.text or 'quad_perm' in c.text) and pv & c.src: n=max(n,2)
            if p.op.split('_e')[0] in TRANS or p.op in TRANS:
                if pv & (c.src) and not (c.op in TRANS): n=max(n,1)
                if pv & c.src and c.op in TRANS: n=max(n,1)
            if ps & c.src:
                n=max(n,4 if c.op.startswith(('v_readlane','v_writelane')) else 2)
            if ('sdwa' in p.op or 'op_sel' in p.text and not p.op.startswith('v_pk')) and pv & (c.src|c.dst): n=max(n,1)
        if isdot and pv & (c.src|c.dst):
            if c.op==p.op:
                ops=[o.strip() for o in re.split(r',(?![^\[]*\])', c.text.split(None,1)[1])]
                ab=parse_reg(ops[1].split()[0])|parse_reg(ops[2].split()[0])
                if pv & ab: n=max(n,3)
            else: n=max(n,3)
        if c.cls=='vmem' and ps & c.src: n=max(n,5)
        if c.cls=='salu' and ps & c.src: n=max(n,0)
    if p.cls=='mfma':
        big = 12 if p.passes==8 else 8
        if c.cls=='mfma':
            if pv & c.srcAB: n=max(n,big)
            if pv & c.srcC:
                if c.srcC==pv and c.passes==p.passes: pass
                else: n=max(n,10 if p.passes==8 else 6)
            if pv & c.dst and not (c.dst==pv and c.srcC==pv): n=max(n,big)
        elif c.cls in ('valu','ds','vmem'):
            if pv & (c.src|c.dst): n=max(n,big)
            pc={r for r in p.srcC if r[0] in 'va'}
            if pc & c.dst: n=max(n,7 if p.passes==8 else 3)
    if p.cls=='salu' and ('s','m0') in p.dst and c.lds_dma: n=max(n,1)
    if p.wide_store and (p.sdata & c.dst): n=max(n,2)
    return n

class Asm:
    def __init__(self):
        self.lines=[]
        self.hist=[]
        self.nops=0
        self.noplog=[]
        self.lq=[]
        self.vq=[]
        self.nid=0
        self.autofix=True
    def raw(self, s): self.lines.append(s)
    def label(self, l): self.lines.append(l+':')
    def comment(self, s): self.lines.append('    ; '+s)
    def _req(self, c):
        dist=0; req=0
        for p in reversed(self.hist[-24:]):
            k=need(p,c)
            if k>dist: req=max(req,k-dist)
            dist+=p.states
            if dist>=20: break
        return req
    def I(self, text):
        c=Ins(text)
        r=self._req(c)
        if r>0:
            self.nops+=r; self.noplog.append((r,text))
            while r>0:
                k=min(r,16)
                n=Ins(f's_nop {k-1}'); self.hist.append(n); self.lines.append(f'    s_nop {k-1}')
                r-=k
        self.hist.append(c); self.lines.append('    '+text)
        if c.cls=='ds' :
            self.nid+=1; self.lq.append(self.nid); return self.nid
        if c.cls=='vmem':
            self.nid+=1; self.vq.append(self.nid); return self.nid
        return None
    def wait_lgkm(self, i):
        if i not in self.lq: return
        n=len(self.lq)-1-self.lq.index(i)
        n=min(n,15)
        self.I(f's_waitcnt lgkmcnt({n})')
        self.lq=self.lq[len(self.lq)-n:] if n>0 else []
    def wait_vm(self, i):
        if i not in self.vq: return
        n=len(self.vq)-1-self.vq.index(i)
        n=min(n,63)
        self.I(f's_waitcnt vmcnt({n})')
        self.vq=self.vq[len(self.vq)-n:] if n>0 else []
    def wait_all(self, vm=True, lgkm=True):
        s='s_waitcnt'
        if vm: s+=' vmcnt(0)'; self.vq=[]
        if lgkm: s+=' lgkmcnt(0)'; self.lq=[]
        self.I(s)
    def text(self): return '\n'.join(self.lines)+'\n'
```

```python
import sys, struct
from asmlib import *

DBG = sys.argv[2] if len(sys.argv)>2 else ''
NAME='standalone__convnext_block__vision'
XB=24576; GS=3328; OS=6664; TB=XB+12*OS; TCS=576; TOS=8*576+8; TEND=TB+12*TOS
W2B=73728
LDSB=163840
assert TEND<=LDSB
def f32(x): return '0x%08x'%struct.unpack('<I',struct.pack('<f',x))[0]
K1=2.0*1.4426950408889634*0.7978845608028654
K3=K1*0.044715
SC=K3**(1.0/3.0)

a=Asm(); I=a.I
stamp_n=[0]
def stamp():
    if 'T' not in DBG: return
    k=stamp_n[0]; stamp_n[0]+=1
    I(f's_memtime s[{60+2*k}:{61+2*k}]')
    I('s_waitcnt lgkmcnt(0)'); a.lq=[]

def dump(regs, slot=0):
    I('s_lshl_b32 s50, s2, 3'); I('s_add_u32 s50, s50, s40'); I('s_lshl_b32 s50, s50, 14')
    I('v_and_b32 v255, 63, v254'); I('v_lshlrev_b32 v255, 2, v255')
    for k,r in enumerate(regs):
        I(f'buffer_store_dword v{r}, v255, s[36:39], s50 offen offset:{(slot+k)*256}')
    a.wait_all()

I('s_load_dwordx8 s[4:11], s[0:1], 0')
I('s_load_dwordx2 s[12:13], s[0:1], 32')
if DBG: I('s_load_dwordx2 s[14:15], s[0:1], 48')
I('s_cmp_ge_u32 s2, 256')
I('s_cbranch_scc1 L_end')
I('v_lshrrev_b32 v2, 6, v0')
I('v_and_b32 v1, 63, v0')
I('v_readfirstlane_b32 s40, v2')
if DBG: I('v_mov_b32 v254, v0')
I('s_and_b32 s41, s2, 7'); I('s_lshl_b32 s41, s41, 5'); I('s_lshr_b32 s42, s2, 3'); I('s_add_u32 s41, s41, s42')
I('s_lshr_b32 s42, s41, 4'); I('s_and_b32 s43, s41, 15')
I('s_mul_i32 s42, s42, 14'); I('s_mul_i32 s43, s43, 14')
I('s_sub_u32 s44, s43, 3')
I('s_movk_i32 s45, 192')
I('s_mov_b32 s46, 0x40000000')
I('v_mul_u32_u24 v3, 43, v1'); I('v_lshrrev_b32 v3, 9, v3')
I('v_mul_u32_u24 v4, 12, v3'); I('v_sub_u32 v4, v1, v4')
I('v_lshlrev_b32 v6, 4, v4')
I('v_mov_b32 v9, s46')
def tab(l):
    l=l+[0]*(8-len(l)); return (sum(l[i]<<(8*i) for i in range(4)), sum(l[4+i]<<(8*i) for i in range(4)))
j0=[tab([3,7,2,6,1,40]),tab([5,9,0,4,8,40])]
ix=[tab([0,29,7,36,14,0]),tab([43,57,21,50,64,0])]
I('s_bitcmp0_b32 s40, 0')
I(f's_cselect_b32 s47, 0x{j0[1][0]:x}, 0x{j0[0][0]:x}' if False else f's_mov_b32 s47, 0x{j0[0][0]:x}')
I(f's_mov_b32 s48, 0x{j0[0][1]:x}'); I(f's_mov_b32 s49, 0x{ix[0][0]:x}'); I(f's_mov_b32 s50, 0x{ix[0][1]:x}')
I(f's_cmov_b32 s47, 0x{j0[1][0]:x}'); I(f's_cmov_b32 s48, 0x{j0[1][1]:x}')
I(f's_cmov_b32 s49, 0x{ix[1][0]:x}'); I(f's_cmov_b32 s50, 0x{ix[1][1]:x}')
I('v_or_b32 v7, 0x0c0c0c00, v3')
I('v_mov_b32 v8, s47')
I('v_perm_b32 v5, s48, v8, v7')
for k in range(4):
    I(f'v_add_u32 v8, {k-3}, v5')
    I(f'v_mad_u32_u24 v{14+k}, v8, s45, v6')
    I('v_cmp_gt_u32 vcc, 7, v8')
    I(f'v_cndmask_b32 v{14+k}, v9, v{14+k}, vcc')
I('s_sub_u32 s51, 7, s40'); I('s_lshr_b32 s51, s51, 1')
I('s_mul_i32 s52, s51, 1344'); I('s_add_u32 s53, s52, 5376')
I('s_waitcnt lgkmcnt(0)')
def srd(d, p, n):
    I(f's_mov_b32 s{d}, s{p}'); I(f's_mov_b32 s{d+1}, s{p+1}'); I(f's_mov_b32 s{d+2}, {n}'); I(f's_mov_b32 s{d+3}, 0x00020000')
srd(20,6,9408)
ldT=[[],[]]
for t in range(2):
    for k in range(4):
        r=32+16*t+4*k
        ldT[t].append(I(f'buffer_load_dwordx4 v[{r}:{r+3}], v{14+k}, s[20:23], s{52+t} offen'))
srd(16,4,9633792)
I('v_lshlrev_b32 v5, 2, v3'); I('v_add_u32 v5, s44, v5')
I('v_cmp_gt_u32 vcc, 60, v1'); I('v_mov_b32 v8, 0x1000'); I('v_cndmask_b32 v5, v8, v5, vcc')
for k in range(4):
    I(f'v_add_u32 v8, {k}, v5')
    I(f'v_mad_u32_u24 v{10+k}, v8, s45, v6')
    I('v_cmp_gt_u32 vcc, 0xe0, v8')
    I(f'v_cndmask_b32 v{10+k}, v9, v{10+k}, vcc')
ldX=[[],[],[]]
for t in range(3):
    I(f's_add_u32 s54, s42, s40'); I(f's_add_u32 s54, s54, {8*t-3}')
    I('s_mul_i32 s55, s54, 43008')
    I('s_cmp_lt_u32 s54, 224'); I('s_cselect_b32 s55, s55, 0x80000000')
    if t==2:
        I('s_cmp_lt_u32 s40, 4'); I('s_cselect_b32 s55, s55, 0x80000000')
    for k in range(4):
        r=64+16*t+4*k
        ldX[t].append(I(f'buffer_load_dwordx4 v[{r}:{r+3}], v{10+k}, s[16:19], s55 offen'))
stamp()
srd(24,8,73728); srd(28,10,73728); srd(32,12,9633792)
if DBG: srd(36,14,268435456)
I('v_lshrrev_b32 v20, 2, v1')
I('v_and_b32 v21, 3, v1')
I('v_bfe_u32 v22, v20, 2, 1'); I('v_mul_u32_u24 v22, 48, v22')
I('v_lshrrev_b32 v23, 3, v20'); I('v_lshl_add_u32 v22, v23, 2, v22')
I('v_and_b32 v23, 3, v20'); I('v_add_u32 v22, v22, v23')
I('v_mul_u32_u24 v22, 0x300, v22'); I('v_lshl_add_u32 v18, v21, 4, v22')
I('v_mul_u32_u24 v22, 0xc0, v20'); I('v_and_b32 v23, 1, v21'); I('v_lshl_add_u32 v22, v23, 4, v22')
I('v_lshrrev_b32 v23, 1, v21'); I('v_mul_u32_u24 v23, 0x60, v23'); I('v_add_u32 v19, v22, v23')
I('s_and_b32 s54, s40, 1'); I('s_mul_i32 s54, s54, 18432'); I('s_lshr_b32 s55, s40, 1'); I('s_lshl_b32 s55, s55, 6')
I('s_add_u32 s54, s54, s55'); I('s_mul_i32 s55, s40, 3072')
for k in range(3):
    I('s_mov_b32 m0, s55')
    I(f's_add_u32 s55, s55, 1024')
    I('buffer_load_dwordx4 v18, s[24:27], s54 offen lds')
    I('s_add_u32 s54, s54, 6144')
I('v_mov_b32 v8, s49'); I('v_perm_b32 v20, s50, v8, v7')
I('v_add_u32 v20, s51, v20'); I('v_lshlrev_b32 v20, 3, v20')
I(f'v_mul_u32_u24 v8, {TOS}, v4'); I('v_add_u32 v20, v20, v8'); I(f'v_add_u32 v20, {TB}, v20')
ct=tab([0,3,2,1,84,3]); st=tab([21,21,21,21,1,21])
I(f's_mov_b32 s56, 0x{ct[1]:x}'); I(f's_mov_b32 s57, 0x{st[1]:x}')
I(f'v_mov_b32 v250, 0x{ct[0]:x}'); I(f'v_mov_b32 v251, 0x{st[0]:x}')
I('v_perm_b32 v21, s56, v250, v7'); I('v_perm_b32 v22, s57, v251, v7')
I('v_lshlrev_b32 v21, 5, v21'); I('v_lshlrev_b32 v22, 5, v22')
I(f'v_mul_u32_u24 v8, {OS}, v4'); I('v_add_u32 v21, v21, v8')
I('s_lshr_b32 s54, s40, 2'); I('s_lshl_b32 s54, s54, 7'); I('s_and_b32 s55, s40, 3'); I('s_lshl_b32 s58, s55, 3')
I('s_add_u32 s58, s58, s54'); I(f's_add_u32 s58, s58, {XB}')
I('s_xor_b32 s55, s55, 2'); I('s_lshl_b32 s55, s55, 3'); I('s_add_u32 s55, s55, s54'); I(f's_add_u32 s59, s55, {XB}')
I('v_add_u32 v24, s58, v21'); I('v_add_u32 v28, s59, v21')
for e in range(1,4):
    I(f'v_add_u32 v{24+e}, v{23+e}, v22'); I(f'v_add_u32 v{28+e}, v{27+e}, v22')
I('s_mov_b32 s54, 0x05040100'); I('s_mov_b32 s55, 0x07060302')

I('v_and_b32 v2, 3, v1'); I('v_bfe_u32 v3, v1, 2, 2'); I('v_lshrrev_b32 v4, 4, v1')
I(f's_lshr_b32 s58, s40, 1'); I(f's_mul_i32 s58, s58, {OS}'); I('s_and_b32 s59, s40, 1'); I(f's_mul_i32 s59, s59, {GS}')
I('s_add_u32 s58, s58, s59'); I(f's_add_u32 s58, s58, {XB}')
def rowpart(dst, hi, lo):
    I(f'v_and_b32 v8, 2, v{hi}'); I(f'v_xor_b32 v8, v8, v{lo}'); I('v_lshlrev_b32 v8, 3, v8')
    I(f'v_lshl_add_u32 v{dst}, v{hi}, 7, v8'); I(f'v_add_u32 v{dst}, s58, v{dst}')
rowpart(240, 2, 4)
I('v_add_u32 v5, 1, v2'); rowpart(241, 5, 4)
I('v_add_u32 v5, 2, v2'); I('v_cmp_eq_u32 vcc, 3, v2'); I('v_cndmask_b32_e64 v5, v5, 1, vcc')
I('v_cmp_gt_u32 vcc, 2, v4')
I('v_cndmask_b32_e64 v6, 0, v4, vcc'); rowpart(242, 5, 6)
I('v_cndmask_b32_e64 v6, 1, v4, vcc'); rowpart(243, 5, 6)
for d in range(3):
    I(f'v_add_u32 v7, {0x0c0c0c00+d}, v3')
    I(f'v_perm_b32 v{244+2*d}, s56, v250, v7'); I(f'v_perm_b32 v{245+2*d}, s57, v251, v7')
    I(f'v_lshlrev_b32 v{244+2*d}, 5, v{244+2*d}'); I(f'v_lshlrev_b32 v{245+2*d}, 5, v{245+2*d}')
I('v_cmp_gt_u32 vcc, 2, v4')
I('v_cndmask_b32 v5, v248, v244, vcc'); I('v_cndmask_b32 v6, v249, v245, vcc')
I('v_cndmask_b32 v7, v248, v246, vcc'); I('v_cndmask_b32 v9, v249, v247, vcc')
BA={}
def mkB(name, row, c, s, base):
    I(f'v_add_u32 v{base}, v{row}, v{c}'); BA[(name,0)]=base
    for e in range(1,4):
        I(f'v_add_u32 v{base+e}, v{base+e-1}, v{s}'); BA[(name,e)]=base+e
mkB('0a',240,244,245,112); mkB('0b',240,246,247,116); mkB('1a',241,244,245,120); mkB('1b',241,246,247,124)
mkB('2a',242,5,6,128); mkB('2b',243,7,9,132); mkB('3a',240,248,249,136); mkB('3b',241,248,249,140)
I('v_sub_u32 v5, v4, v3')
I('v_mul_u32_u24 v6, 7, v2'); I('v_add_u32 v6, v6, v5')
I(f's_lshr_b32 s59, s40, 1'); I(f's_mul_i32 s59, s59, {TOS}'); I('s_and_b32 s47, s40, 1'); I(f's_mul_i32 s47, s47, {4*TCS}')
I('s_add_u32 s59, s59, s47'); I(f's_add_u32 s59, s59, {TB}')
I('v_mov_b32 v240, 28'); I('v_mov_b32 v241, 0x47')
I('v_cmp_le_i32_e64 s[60:61], 0, v5' if 'T' not in DBG else 'v_cmp_le_i32_e64 s[90:91], 0, v5')
SA = 60 if 'T' not in DBG else 90
I(f'v_cmp_ge_i32_e64 s[{SA+2}:{SA+3}], 2, v5')
I(f'v_cmp_ge_i32_e64 s[{SA+4}:{SA+5}], -2, v5')
I(f'v_cmp_le_u32_e64 s[{SA+6}:{SA+7}], 2, v2')
I(f'v_cmp_gt_u32_e64 s[{SA+8}:{SA+9}], 2, v4')
AA={}
def mkA(name, add, mask, zero, dst):
    I(f'v_add_u32 v8, {add}, v6'); I(f'v_cndmask_b32_e64 v{dst}, v{zero}, v8, {mask}'); AA[name]=dst
mA=f's[{SA}:{SA+1}]'; mB=f's[{SA+2}:{SA+3}]'; mC=f's[{SA+4}:{SA+5}]'; mP=f's[{SA+6}:{SA+7}]'; mK=f's[{SA+8}:{SA+9}]'
mkA('0a',0,mA,240,144); mkA('0b',29,mA,240,145); mkA('1a',4,mB,240,146); mkA('1b',33,mB,240,147)
I(f's_and_b64 s[48:49], {mA}, {mP}'); mkA('3a',43,'s[48:49]',241,150)
I(f's_and_b64 s[48:49], {mB}, {mP}'); mkA('3b',47,'s[48:49]',241,151)
I(f's_and_b64 s[48:49], {mC}, {mK}'); mkA('2a',8,'s[48:49]',240,148); mkA('2b',37,'s[48:49]',240,149)
I(f'v_cndmask_b32_e64 v148, v241, v148, {mK}'); I(f'v_cndmask_b32_e64 v149, v241, v149, {mK}')
I('v_cmp_eq_u32 vcc, 2, v4'); I(f's_and_b64 s[48:49], vcc, {mP}')
I('v_cmp_le_u32 vcc, 2, v3'); I('s_and_b64 s[50:51], vcc, s[48:49]')
I('v_add_u32 v8, 49, v6'); I('v_cndmask_b32_e64 v148, v148, v8, s[50:51]')
I('v_cmp_eq_u32 vcc, 3, v3'); I('s_and_b64 s[50:51], vcc, s[48:49]')
I('v_add_u32 v8, 50, v6'); I('v_cndmask_b32_e64 v149, v149, v8, s[50:51]')
for r in range(144,152):
    I(f'v_lshlrev_b32 v{r}, 3, v{r}'); I(f'v_add_u32 v{r}, s59, v{r}')
I('v_lshlrev_b32 v152, 3, v1'); I('v_add_u32 v152, s58, v152')
I('v_lshrrev_b32 v5, 3, v1'); I(f'v_mul_u32_u24 v5, {4*TOS}, v5'); I('v_bfe_u32 v6, v1, 1, 2'); I(f'v_mul_u32_u24 v6, {TCS}, v6')
I('v_and_b32 v7, 1, v1'); I(f'v_mul_u32_u24 v7, {43*8}, v7'); I('v_add3_u32 v5, v5, v6, v7'); I(f'v_add_u32 v5, s59, v5')
I('v_mov_b32 v6, 0'); I('v_mov_b32 v7, 0')
I('s_mov_b64 exec, 0xffffff')
I(f'ds_write_b64 v5, v[6:7] offset:{28*8}')
I('s_mov_b32 exec_lo, -1'); I('s_mov_b32 exec_hi, 0x0fffffff')

def transpose(src, addr_of):
    for d in range(4):
        o=160+4*d
        I(f'v_perm_b32 v{o}, v{src+4+d}, v{src+d}, s54'); I(f'v_perm_b32 v{o+1}, v{src+12+d}, v{src+8+d}, s54')
        I(f'v_perm_b32 v{o+2}, v{src+4+d}, v{src+d}, s55'); I(f'v_perm_b32 v{o+3}, v{src+12+d}, v{src+8+d}, s55')
        for h in range(2):
            ad,off=addr_of(2*d+h)
            I(f'ds_write_b64 v{ad}, v[{o+2*h}:{o+2*h+1}] offset:{off}')
a.wait_vm(ldT[0][3]); transpose(32, lambda j:(20, j*TCS))
a.wait_vm(ldT[1][3])
I('s_cmp_lt_u32 s40, 2'); I('s_cbranch_scc1 L_skipT1')
transpose(48, lambda j:(20, j*TCS+32))
a.label('L_skipT1')
a.wait_vm(ldX[0][3]); transpose(64, lambda j:(24+j%4, (j//4)*GS))
a.wait_vm(ldX[1][3]); transpose(80, lambda j:(28+j%4, (j//4)*GS+256))
I('s_cmp_ge_u32 s40, 4'); I('s_cbranch_scc1 L_skipX2')
a.wait_vm(ldX[2][3]); transpose(96, lambda j:(24+j%4, (j//4)*GS+512))
a.label('L_skipX2')
I('s_mov_b64 exec, -1')
a.wait_all()
I('s_barrier')
stamp()

NB=5
RING=[32+8*k for k in range(NB)]
DREG=lambda g,e: 72+16*(g%2)+4*e
steps=[(g,e,m) for g in range(3) for e in range(4) for m in range(4)]
ids={}
def conv_reads(n):
    g,e,m=steps[n]; r=RING[n%NB]
    ao=g*4*TOS+e*TCS; bo=g*4*OS
    I(f'ds_read_b64 v[{r}:{r+1}], v{AA[str(m)+"a"]} offset:{ao}')
    I(f'ds_read_b64 v[{r+2}:{r+3}], v{AA[str(m)+"b"]} offset:{ao}')
    I(f'ds_read_b64 v[{r+4}:{r+5}], v{BA[(str(m)+"a",e)]} offset:{bo}')
    ids[n]=I(f'ds_read_b64 v[{r+6}:{r+7}], v{BA[(str(m)+"b",e)]} offset:{bo}')
def conv_out(g):
    d=DREG(g,0)
    for p in range(4):
        o=160+2*p
        I(f'v_cvt_pk_bf16_f32 v{o}, v{d+p}, v{d+4+p}'); I(f'v_cvt_pk_bf16_f32 v{o+1}, v{d+8+p}, v{d+12+p}')
        I(f'ds_write_b64 v152, v[{o}:{o+1}] offset:{g*4*OS+p*520}')
LEAD=3
for n in range(LEAD): conv_reads(n)
for n,(g,e,m) in enumerate(steps):
    if n+LEAD<len(steps): conv_reads(n+LEAD)
    a.wait_lgkm(ids[n])
    r=RING[n%NB]; d=DREG(g,e)
    I(f'v_mfma_f32_16x16x32_bf16 v[{d}:{d+3}], v[{r}:{r+3}], v[{r+4}:{r+7}], '+('0' if m==0 else f'v[{d}:{d+3}]'))
    if g>0 and e==0 and m==3: conv_out(g-1)
I('v_and_b32 v2, 31, v1'); I('s_lshl_b32 s47, s40, 5'); I('v_add_u32 v2, s47, v2')
I('v_min_u32 v3, 0xc3, v2')
I('v_mul_u32_u24 v4, 0x124a, v3'); I('v_lshrrev_b32 v4, 16, v4')
I('v_mul_u32_u24 v5, 14, v4'); I('v_sub_u32 v5, v3, v5')
I('v_lshrrev_b32 v6, 5, v1')
conv_out(2)
I('v_and_b32 v7, 3, v5'); I('v_mul_u32_u24 v7, 0x41, v7'); I('v_and_b32 v8, 3, v4'); I('v_lshl_add_u32 v7, v8, 4, v7')
I('v_and_b32 v8, 12, v5'); I('v_add_u32 v7, v7, v8'); I('v_lshrrev_b32 v8, 2, v4'); I('v_add_u32 v7, v7, v8')
I('v_lshlrev_b32 v7, 3, v7'); I(f'v_mul_u32_u24 v8, {6*OS}, v6'); I('v_add_u32 v7, v7, v8'); I(f'v_add_u32 v231, {XB}, v7')
I('v_add_u32 v4, s42, v4'); I('v_mul_u32_u24 v4, 0xe0, v4'); I('v_add_u32 v4, v4, v5'); I('v_add_u32 v4, s43, v4')
I('v_mul_lo_u32 v4, v4, s45'); I('v_mul_u32_u24 v8, 0x60, v6'); I('v_add_u32 v4, v4, v8')
I('v_cmp_gt_u32 vcc, 0xc4, v2'); I('v_mov_b32 v8, s46'); I('v_cndmask_b32 v230, v8, v4, vcc')
I('v_bfe_u32 v2, v1, 2, 2'); I('v_lshl_add_u32 v2, v6, 2, v2'); I('v_lshlrev_b32 v2, 6, v2')
I('v_bfe_u32 v3, v1, 4, 1'); I('v_and_b32 v4, 3, v1')
I('v_lshlrev_b32 v5, 5, v3'); I('v_lshl_add_u32 v5, v4, 3, v5'); I('v_add_u32 v228, v2, v5')
I('v_and_b32 v5, 1, v4'); I('v_lshlrev_b32 v5, 5, v5'); I('v_lshl_add_u32 v5, v3, 4, v5')
I('v_lshrrev_b32 v4, 1, v4'); I('v_lshl_add_u32 v5, v4, 3, v5'); I('v_add_u32 v229, v2, v5'); I(f'v_add_u32 v229, {W2B}, v229')
I('v_and_b32 v2, 31, v1')
I('v_lshrrev_b32 v3, 3, v2'); I('v_lshlrev_b32 v3, 1, v3'); I('v_bfe_u32 v4, v2, 1, 1'); I('v_add_u32 v3, v3, v4')
I('v_bfe_u32 v4, v2, 2, 1'); I('v_cmp_eq_u32 vcc, v4, v6'); I('v_mov_b32 v5, 9'); I('v_cndmask_b32 v3, v5, v3, vcc')
I('v_and_b32 v4, 1, v2'); I('v_lshlrev_b32 v4, 4, v4'); I('v_mov_b32 v5, 0x3f80'); I('v_lshlrev_b32 v4, v4, v5')
for k in range(8):
    I(f'v_cmp_eq_u32 vcc, {k}, v3'); I(f'v_cndmask_b32_e64 v{232+k}, 0, v4, vcc')
a.wait_all()
I('s_barrier')
stamp()

H0=0; F1=24; F2=48; ACC=72; AS=120; TS=168; YB=216
I('v_mov_b32 v227, v18'); I('v_mov_b32 v226, v19')
for s in range(6):
    I(f'ds_read_b64 v[{4*s}:{4*s+1}], v231 offset:{s*OS}')
    I(f'ds_read_b64 v[{4*s+2}:{4*s+3}], v231 offset:{s*OS+GS}')
def trread(base, k, addr, off):
    I(f'ds_read_b64_tr_b16 v[{base+4*k}:{base+4*k+1}], v{addr} offset:{off+k*1024}')
    return I(f'ds_read_b64_tr_b16 v[{base+4*k+2}:{base+4*k+3}], v{addr} offset:{off+k*1024+512}')
a.wait_all()
I('s_barrier')
I('s_bitcmp1_b32 s40, 0')
I('s_cselect_b32 s44, s24, s28'); I('s_cselect_b32 s45, s25, s29'); I('s_mov_b32 s46, 73728'); I('s_mov_b32 s47, 0x00020000')
I('s_cselect_b32 s48, 6144, 32'); I('s_movk_i32 s49, 3008'); I('s_cmov_b32 s49, 6144')
I('s_cselect_b64 vcc, -1, 0')
I('s_lshr_b32 s50, s40, 1')
I('s_lshl_b32 s51, s50, 6'); I('s_add_u32 s51, s51, 256'); I('s_mul_i32 s52, s50, 6144')
I('s_bitcmp1_b32 s40, 0'); I('s_cselect_b32 s51, s51, s52'); I('s_movk_i32 s53, 24576'); I('s_cmov_b32 s53, 256')
I(f's_mov_b32 s54, {W2B}'); I('s_cmov_b32 s54, 24576'); I('s_add_u32 s54, s54, s52')
I('v_cndmask_b32 v225, v226, v227, vcc')
dma=[]
for grp in range(2):
    I('s_mov_b32 s55, s51')
    for k in range(6):
        I('s_mov_b32 m0, s54'); I('s_add_u32 s54, s54, 1024')
        dma.append(I('buffer_load_dwordx4 v225, s[44:47], s55 offen lds'))
        I('s_add_u32 s55, s55, '+('s49' if k==2 else 's48'))
    I('s_add_u32 s51, s51, s53'); I(f's_add_u32 s54, s54, {24576-6144}')
I('s_and_b32 s55, s40, 1'); I('s_mul_i32 s55, s55, 3072'); I('s_add_u32 s55, s55, s52'); I(f's_add_u32 s55, s55, {8*6144}')
I(f's_add_u32 s54, s55, {W2B}')
for k in range(3):
    I('s_mov_b32 m0, s54'); I('s_add_u32 s54, s54, 1024')
    dma.append(I('buffer_load_dwordx4 v226, s[28:31], s55 offen lds'))
    I('s_add_u32 s55, s55, 32')
I('s_cmp_eq_u32 s40, 7'); I('s_cbranch_scc1 L_w7')
if 'H' in DBG: dump(range(24))
f1id={}
for k in range(6): f1id[k]=trread(F1,k,228,0)
I('s_mov_b32 s56, 0x3f803f80')
for r in (240,241,242,243): I(f'v_mov_b32 v{r}, 0')
for d in range(24):
    I(f'v_dot2_f32_bf16 v{240+(d&1)}, v{d}, s56, v{240+(d&1)}')
    I(f'v_dot2_f32_bf16 v{242+(d&1)}, v{d}, v{d}, v{242+(d&1)}')
for r in range(ACC,ACC+48,2): I(f'v_mov_b64 v[{r}:{r+1}], 0')
I('v_add_f32 v240, v240, v241'); I('v_add_f32 v242, v242, v243')
I('v_mov_b32 v241, v240'); I('v_mov_b32 v243, v242')
I('v_permlane32_swap_b32 v240, v241'); I('v_permlane32_swap_b32 v242, v243')
I('v_add_f32 v240, v240, v241'); I('v_add_f32 v242, v242, v243')
I(f'v_mul_f32 v240, {f32(1/96.)}, v240')
I(f'v_mul_f32 v242, {f32(1/96.)}, v242')
I('v_fma_f32 v242, -v240, v240, v242')
I('v_max_f32 v242, 0, v242')
I(f'v_add_f32 v242, {f32(1e-5)}, v242')
I('v_rsq_f32 v242, v242')
I(f'v_mul_f32 v243, {f32(SC)}, v242')
I('v_cvt_pk_bf16_f32 v244, v243, 0')
I('v_lshlrev_b32 v245, 16, v244')
I('v_rcp_f32 v246, v245')
I('v_mul_f32 v247, v240, v245'); I('v_sub_f32 v247, 0, v247')
I('v_mul_f32 v226, v242, v246'); I('v_mov_b32 v227, v226')
I(f'v_mul_f32 v224, {f32(-K1)}, v226'); I('v_mov_b32 v225, v224')
for d0 in range(0,24,4):
    for d in range(d0,d0+4):
        t=AS+2*(d-d0)
        I(f'v_dot2_f32_bf16 v{t}, v{d}, v244, v247'); I(f'v_dot2_f32_bf16 v{t+1}, v{d}, v245, v247')
    for d in range(d0,d0+4):
        t=AS+2*(d-d0)
        I(f'v_cvt_pk_bf16_f32 v{d}, v{t}, v{t+1}')
if 'N' in DBG: dump(list(range(24))+[224,226])
I('s_mov_b32 s56, 1.0'); I('s_mov_b32 s57, 1.0')
stamp()

f2id={}
def iteration(i, inloop=False):
    c1=i+2; ce=i+1; cr=i; c2=i-1
    ok=lambda c: 0<=c<=11
    fill=[]
    if ok(c2):
        t=TS+16*(c2%3)
        for k in range(8): fill.append((f'v_cvt_pk_bf16_f32 v{YB+k}, v{t+2*k}, v{t+2*k+1}',4))
    tr=[]
    if ok(ce): tr.append([f'v_exp_f32 v{TS+16*(ce%3)+k}, v{TS+16*(ce%3)+k}' for k in range(16)])
    if ok(cr): tr.append([f'v_rcp_f32 v{TS+16*(cr%3)+k}, v{TS+16*(cr%3)+k}' for k in range(16)])
    for k in range(16):
        for l in tr: fill.append((l[k],8))
    def filler(budget):
        while fill and budget>=fill[0][1]:
            t,c=fill.pop(0); I(t); budget-=c
    if ok(c1):
        A_=AS+16*(c1%3)
        for k in range(6):
            if k==0: a.wait_lgkm(f1id[5])
            I(f'v_mfma_f32_32x32x16_bf16 v[{A_}:{A_+15}], v[{F1+4*k}:{F1+4*k+3}], v[{H0+4*k}:{H0+4*k+3}], '+('0' if k==0 else f'v[{A_}:{A_+15}]'))
            if k==0: I(f'v_add_u32 v228, 0x1800, v228')
            if ok(c1+1) or inloop: f1id[k]=trread(F1,k,228,0)
            filler(24 if k else 20)
    else:
        filler(32)
    if i==0:
        a.wait_vm(dma[5]); I('s_barrier')
    if ok(c2):
        for k in range(6):
            s2,o=divmod(k,3)
            if k==0: a.wait_lgkm(f2id[5])
            C=ACC+16*o
            I(f'v_mfma_f32_32x32x16_bf16 v[{C}:{C+15}], v[{F2+4*k}:{F2+4*k+3}], v[{YB+4*s2}:{YB+4*s2+3}], v[{C}:{C+15}]')
            if k==0: I(f'v_add_u32 v229, 0x1800, v229')
            if ok(c2+1): f2id[k]=trread(F2,k,229,0)
            filler(24 if k else 20)
    elif c2==-1:
        for k in range(6): f2id[k]=trread(F2,k,229,0)
    filler(10**6)
    if ok(c1):
        A_=AS+16*(c1%3); T_=TS+16*(c1%3)
        for k in range(0,16,2):
            I(f'v_pk_fma_f32 v[{T_+k}:{T_+k+1}], v[{A_+k}:{A_+k+1}], v[{A_+k}:{A_+k+1}], v[224:225] neg_lo:[1,0,0] neg_hi:[1,0,0]')
        for k in range(0,16,2):
            I(f'v_pk_mul_f32 v[{T_+k}:{T_+k+1}], v[{A_+k}:{A_+k+1}], v[{T_+k}:{T_+k+1}]')
    if ok(ce):
        T_=TS+16*(ce%3)
        for k in range(0,16,2): I(f'v_pk_add_f32 v[{T_+k}:{T_+k+1}], v[{T_+k}:{T_+k+1}], s[56:57]')
    if ok(cr):
        A_=AS+16*(cr%3); T_=TS+16*(cr%3)
        for k in range(0,16,2): I(f'v_pk_mul_f32 v[{T_+k}:{T_+k+1}], v[{A_+k}:{A_+k+1}], v[{T_+k}:{T_+k+1}]')

for i in (-2,-1,0): iteration(i)
I('s_mov_b32 s58, 0')
a.label('L_loop')
n0=len(a.lines)
for i in (1,2,3): iteration(i, True)
I('s_cmp_lg_u32 s58, 0'); I('s_cbranch_scc1 L_nobar')
I('s_waitcnt vmcnt(0)'); I('s_barrier')
a.label('L_nobar')
I('s_add_u32 s58, s58, 1'); I('s_cmp_lt_u32 s58, 3'); I('s_cbranch_scc1 L_loop')
a.vq=[]
save=(list(a.lines), a.nops, list(a.noplog))
body1=a.lines[n0:]
n1=len(a.lines)
for i in (4,5,6): iteration(i, True)
body2=a.lines[n1:]
assert body2==body1[:len(body2)], "loop body differs on second pass"
a.lines=save[0]
xres=[]
for k in range(6):
    xres.append(I(f'buffer_load_dwordx4 v[{4*k}:{4*k+3}], v230, s[16:19], 0 offen offset:{16*k}'))
for i in (10,11,12): iteration(i)
stamp()
a.wait_vm(xres[5])
for o in range(3):
    X=AS+16*o
    I(f'v_mfma_f32_32x32x16_bf16 v[{X}:{X+15}], v[232:235], v[{8*o}:{8*o+3}], 0')
    I(f'v_mfma_f32_32x32x16_bf16 v[{X}:{X+15}], v[236:239], v[{8*o+4}:{8*o+7}], v[{X}:{X+15}]')
for o in range(3):
    X=AS+16*o; C=ACC+16*o; O=TS+8*o
    for k in range(0,16,2):
        I(f'v_pk_fma_f32 v[{C+k}:{C+k+1}], v[{C+k}:{C+k+1}], v[226:227], v[{X+k}:{X+k+1}]')
    for k in range(8):
        I(f'v_cvt_pk_bf16_f32 v{O+k}, v{C+2*k}, v{C+2*k+1}')
    I(f'buffer_store_dwordx4 v[{O}:{O+3}], v230, s[32:35], 0 offen offset:{32*o}')
    I(f'buffer_store_dwordx4 v[{O+4}:{O+7}], v230, s[32:35], 0 offen offset:{32*o+16}')
if 'T' in DBG:
    a.wait_all(); stamp()
    n=stamp_n[0]
    for k in range(n): I(f'v_mov_b32 v{k}, s{60+2*k}')
    dump(range(n))
I('s_endpgm')
a.label('L_w7')
I('s_waitcnt vmcnt(9)'); I('s_barrier'); I('s_waitcnt vmcnt(0)'); I('s_barrier')
a.label('L_end')

hdr=open('cdna_kernels/'+NAME+'.s.ref').read().split('\n')
top=[l for l in hdr if l.startswith(';') and '@launch' not in l and not l.startswith('; Override') and not l.startswith('; grid=')]
out='\n'.join(top)+f'\n; @launch grid=(256,1,1) block=(512,1,1) lds={LDSB}\n'
out+=f'''.amdgcn_target "amdgcn-amd-amdhsa--gfx950"
.text
.globl {NAME}_kernel
.p2align 8
.type {NAME}_kernel,@function
{NAME}_kernel:
'''+a.text()+f'''s_endpgm
.section .rodata,"a"
.p2align 6
.amdhsa_kernel {NAME}_kernel
  .amdhsa_next_free_vgpr 256
  .amdhsa_next_free_sgpr 102
  .amdhsa_accum_offset 256
  .amdhsa_group_segment_fixed_size 0
  .amdhsa_kernarg_size 56
  .amdhsa_user_sgpr_count 2
  .amdhsa_user_sgpr_kernarg_segment_ptr 1
  .amdhsa_system_sgpr_workgroup_id_x 1
.end_amdhsa_kernel
'''
open(sys.argv[1],'w').write(out)
print('nops inserted:',a.nops, 'instrs', len(a.hist))
for r,t in a.noplog: print('  nop',r,'before',t)
```

```python
import sys, struct
from asmlib import *

DBG = sys.argv[2] if len(sys.argv)>2 else ''
NAME='standalone__convnext_block__vision'
XB=24576; GS=3200; OS=6416; TB=XB+12*OS; TCS=584; TEND=TB+96*TCS
W2B=73728
LDSB=163840
assert TEND<=LDSB
def f32(x): return '0x%08x'%struct.unpack('<I',struct.pack('<f',x))[0]
K1=2.0*1.4426950408889634*0.7978845608028654
K3=K1*0.044715
SC=K3**(1.0/3.0)

a=Asm(); I=a.I
NST=13
def stamp(k):
    if 'T' not in DBG: return
    assert k<NST
    I(f's_memtime s[{60+2*k}:{61+2*k}]')
    I('s_waitcnt lgkmcnt(0)')
def dump(regs, slot=0, tmp=255):
    I('s_lshl_b32 s50, s2, 3'); I('s_add_u32 s50, s50, s40'); I('s_lshl_b32 s50, s50, 14')
    I(f'v_mbcnt_lo_u32_b32 v{tmp}, -1, 0'); I(f'v_mbcnt_hi_u32_b32 v{tmp}, -1, v{tmp}'); I(f'v_lshlrev_b32 v{tmp}, 2, v{tmp}')
    for k,r in enumerate(regs):
        I(f'buffer_store_dword v{r}, v{tmp}, s[36:39], s50 offen offset:{(slot+k)*256}')
    a.wait_all()
def final_stamps():
    if 'T' not in DBG: return
    a.wait_all(); stamp(NST-1)
    I('s_memrealtime s[88:89]'); I('s_waitcnt lgkmcnt(0)')
    for k in range(NST): I(f'v_mov_b32 v{k}, s{60+2*k}')
    I(f'v_mov_b32 v{NST}, s86'); I(f'v_mov_b32 v{NST+1}, s88')
    dump(range(NST+2))

if 'T' in DBG:
    I('s_memrealtime s[86:87]')
    for k in range(NST): I(f's_memtime s[{60+2*k}:{61+2*k}]')
I('s_load_dwordx8 s[4:11], s[0:1], 0')
I('s_load_dwordx2 s[12:13], s[0:1], 32')
if DBG: I('s_load_dwordx2 s[14:15], s[0:1], 48')
I('s_cmp_ge_u32 s2, 256')
I('s_cbranch_scc1 L_end')
I('v_lshrrev_b32 v2, 6, v0')
I('v_and_b32 v1, 63, v0')
I('v_readfirstlane_b32 s40, v2')
I('s_and_b32 s41, s2, 7'); I('s_lshl_b32 s41, s41, 5'); I('s_lshr_b32 s42, s2, 3'); I('s_add_u32 s41, s41, s42')
I('s_lshr_b32 s42, s41, 4'); I('s_and_b32 s43, s41, 15')
I('s_mul_i32 s42, s42, 14'); I('s_mul_i32 s43, s43, 14')
I('s_sub_u32 s44, s43, 3')
I('s_movk_i32 s45, 192')
I('s_mov_b32 s46, 0x40000000')
I('v_mul_u32_u24 v3, 43, v1'); I('v_lshrrev_b32 v3, 9, v3')
I('v_mul_u32_u24 v4, 12, v3'); I('v_sub_u32 v4, v1, v4')
I('v_lshlrev_b32 v6, 4, v4')
I('v_mov_b32 v9, s46')
I('v_lshlrev_b32 v14, 4, v1')
I('v_lshlrev_b32 v5, 2, v3'); I('v_add_u32 v5, s44, v5')
I('v_cmp_gt_u32 vcc, 60, v1'); I('v_mov_b32 v8, 0x1000'); I('v_cndmask_b32 v5, v8, v5, vcc')
for k in range(4):
    I(f'v_add_u32 v8, {k}, v5')
    I(f'v_mad_u32_u24 v{10+k}, v8, s45, v6')
    I('v_cmp_gt_u32 vcc, 0xe0, v8')
    I(f'v_cndmask_b32 v{10+k}, v9, v{10+k}, vcc')
for t,d in enumerate((-3,5,9)):
    I(f's_add_u32 s47, s42, s40'); I(f's_add_u32 s47, s47, {d}')
    I(f's_mul_i32 s{52+t}, s47, 43008')
    I('s_cmp_lt_u32 s47, 224'); I(f's_cselect_b32 s{52+t}, s{52+t}, 0x80000000')
I('s_mul_i32 s51, s40, 1344')
I('s_mul_i32 s55, s40, 3072'); I('s_add_u32 m0, s55, 576')
I('s_waitcnt lgkmcnt(0)')
def srd(d, p, n):
    I(f's_mov_b32 s{d}, s{p}'); I(f's_mov_b32 s{d+1}, s{p+1}'); I(f's_mov_b32 s{d+2}, {n}'); I(f's_mov_b32 s{d+3}, 0x00020000')
srd(20,6,9408)
I('buffer_load_dwordx4 v14, s[20:23], s51 offen lds')
I('s_mov_b64 exec, 0xfffff')
I('buffer_load_dwordx4 v14, s[20:23], s51 offen offset:1024 lds')
I('s_mov_b64 exec, -1')
srd(16,4,9633792)
I('s_cmp_lt_u32 s40, 4'); I('s_cbranch_scc1 L_noX2')
for k in range(4): I(f'buffer_load_dwordx4 v[{96+4*k}:{99+4*k}], v{10+k}, s[16:19], s54 offen')
a.label('L_noX2')
for t in range(2):
    for k in range(4):
        r=64+16*t+4*k
        I(f'buffer_load_dwordx4 v[{r}:{r+3}], v{10+k}, s[16:19], s{52+t} offen')
stamp(1)
srd(24,8,73728); srd(28,10,73728); srd(32,12,9633792)
if DBG: srd(36,14,268435456)
for r in range(160,164): I(f'v_mov_b32 v{r}, 0')
I('v_add_u32 v15, s55, v14')
I('v_lshrrev_b32 v5, 1, v1'); I('s_mul_i32 s47, s40, 12'); I('v_add_u32 v5, s47, v5'); I(f'v_mul_u32_u24 v5, {TCS}, v5')
I('v_and_b32 v7, 1, v1'); I(f'v_mul_u32_u24 v7, {43*8}, v7'); I(f'v_add_u32 v5, v5, v7'); I(f'v_add_u32 v5, {TB}, v5')
I('s_mov_b64 exec, 0xffffff')
I(f'ds_write_b64 v5, v[160:161] offset:{28*8}')
I('s_mov_b32 exec_lo, -1'); I('s_mov_b32 exec_hi, 0xf')
I('ds_write_b128 v15, v[160:163]'); I('ds_write_b128 v15, v[160:163] offset:1920')
I('s_mov_b64 exec, -1')
I('v_lshrrev_b32 v20, 2, v1')
I('v_and_b32 v21, 3, v1')
I('v_bfe_u32 v22, v20, 2, 1'); I('v_mul_u32_u24 v22, 48, v22')
I('v_lshrrev_b32 v23, 3, v20'); I('v_lshl_add_u32 v22, v23, 2, v22')
I('v_and_b32 v23, 3, v20'); I('v_add_u32 v22, v22, v23')
I('v_mul_u32_u24 v22, 0x300, v22'); I('v_lshl_add_u32 v18, v21, 4, v22')
I('v_mul_u32_u24 v22, 0xc0, v20'); I('v_and_b32 v23, 1, v21'); I('v_lshl_add_u32 v22, v23, 4, v22')
I('v_lshrrev_b32 v23, 1, v21'); I('v_mul_u32_u24 v23, 0x60, v23'); I('v_add_u32 v19, v22, v23')
I('v_and_b32 v22, 3, v20'); I('v_mul_u32_u24 v22, 0xc0, v22'); I('v_lshl_add_u32 v22, v21, 3, v22'); I('v_add_u32 v22, s55, v22')
I('v_lshrrev_b32 v23, 4, v1'); I('v_lshl_add_u32 v16, v23, 5, v22')
I('v_and_b32 v23, 1, v23'); I('v_lshl_add_u32 v17, v23, 5, v22'); I('v_add_u32 v17, 0x80, v17')
I('v_cmp_gt_u32 vcc, 32, v1'); I('v_mov_b32 v23, 0xc0'); I('v_cndmask_b32 v23, 0, v23, vcc'); I('v_add_u32 v17, v17, v23')
I('s_lshl_b32 s47, s40, 3'); I(f's_add_u32 s47, s47, {TB}')
I(f'v_mul_u32_u24 v24, {TCS}, v1'); I('v_add_u32 v24, s47, v24')
I('v_and_b32 v25, 31, v1'); I(f'v_mul_u32_u24 v25, {TCS}, v25'); I(f'v_mov_b32 v23, {64*TCS+56}'); I(f'v_mov_b32 v22, {64*TCS}')
I('v_cndmask_b32 v23, v23, v22, vcc'); I('v_add3_u32 v25, v25, v23, s47')
I(f'v_mul_u32_u24 v26, {OS}, v4'); I('v_mul_u32_u24 v22, 0x140, v3'); I('v_add_u32 v26, v26, v22')
I('s_lshl_b32 s47, s40, 3'); I(f's_add_u32 s47, s47, {XB}'); I('v_add_u32 v26, s47, v26')
I('s_mov_b32 s56, 0x05040100'); I('s_mov_b32 s57, 0x07060302')

SLOTS=[[(0,0),(1,0),(2,0),(3,0)],[(0,1),(1,1),(2,1),(4,1)],[(0,2),(1,2),(2,2),(3,2)],[(3,1),(4,0),(4,2),None]]
CLAMP=[None,1,None,2]; ZERO=[28,28,71,28]
I('v_and_b32 v2, 3, v1'); I('v_bfe_u32 v3, v1, 2, 2'); I('v_lshrrev_b32 v4, 4, v1'); I('v_lshlrev_b32 v5, 3, v4')
I(f's_lshr_b32 s58, s40, 1'); I(f's_mul_i32 s58, s58, {OS}'); I('s_and_b32 s59, s40, 1'); I(f's_mul_i32 s59, s59, {GS}')
I('s_add_u32 s58, s58, s59'); I(f's_add_u32 s58, s58, {XB}')
I(f's_mul_i32 s59, s40, {4*TCS}'); I(f's_add_u32 s59, s59, {TB}')
I('v_lshlrev_b32 v6, 1, v3')
I('v_mul_u32_u24 v7, 7, v2')
I('v_cmp_gt_u32 vcc, 2, v2'); I('v_cndmask_b32_e64 v28, 0, 16, vcc')
I('v_cmp_eq_u32 vcc, 2, v4'); I('v_cndmask_b32 v29, 0, v28, vcc')
I('v_mov_b32 v30, 28'); I('v_mov_b32 v31, 0x47')
I('s_movk_i32 s48, 0x140')
def pk8(l): return sum(x<<(8*i) for i,x in enumerate(l))
BA={}; AA={}
for m,sl in enumerate(SLOTS):
    slb=[s if s else (1,0) for s in sl]
    I(f's_mov_b32 s47, 0x{pk8([s[0]|s[1]<<4 for s in slb]):x}')
    I('v_bfe_u32 v8, s47, v5, 4'); I('v_add_u32 v8, v8, v6')
    if CLAMP[m] is not None:
        I('v_cmp_lt_u32 vcc, 9, v8'); I(f'v_cndmask_b32_e64 v8, v8, {CLAMP[m]}, vcc')
    I('s_lshr_b32 s47, s47, 4')
    I('v_bfe_u32 v9, s47, v5, 4'); I('v_add_u32 v9, v9, v2'); I('v_min_u32 v9, 4, v9')
    I('v_lshlrev_b32 v8, 4, v8'); I('v_mad_u32_u24 v8, v9, s48, v8'); I(f'v_add_u32 v{112+m}, s58, v8'); BA[m]=112+m
    I(f's_mov_b32 s47, 0x{pk8([(2*s[0] if s else 24) for s in sl]):x}')
    I(f's_mov_b32 s49, 0x{pk8([([0,29,43][s[1]] if s else 0) for s in sl]):x}')
    I('v_bfe_u32 v8, s47, v5, 8'); I('v_sub_u32 v8, v8, v3')
    if m==2: I('v_add_u32 v8, v8, v28')
    if m==3: I('v_add_u32 v8, v8, v29')
    I('v_bfe_u32 v9, s49, v5, 8'); I('v_add3_u32 v9, v9, v7, v8')
    z=30 if ZERO[m]==28 else 31
    for h in range(2):
        d=116+2*m+h; AA[(m,h)]=d
        if h: I('v_add_u32 v8, 1, v8'); I('v_add_u32 v9, 1, v9')
        I('v_cmp_gt_u32 vcc, 7, v8'); I(f'v_cndmask_b32 v{d}, v{z}, v9, vcc')
        I(f'v_lshlrev_b32 v{d}, 3, v{d}'); I(f'v_add_u32 v{d}, s59, v{d}')
I('v_lshlrev_b32 v8, 4, v4'); I('v_lshl_add_u32 v8, v2, 2, v8'); I('v_add_u32 v8, v8, v3'); I('v_lshlrev_b32 v8, 3, v8'); I('v_add_u32 v124, s58, v8')

I('s_lshr_b32 s47, s40, 1'); I('s_add_u32 s47, s47, 2'); I('s_cmp_lt_u32 s40, 4'); I('s_cselect_b32 s47, s40, s47'); I('s_lshl_b32 s47, s47, 5')
def pixaddr(n, ln, gl, t0, t1, t2):
    I(f'v_mul_u32_u24 v{t0}, 0x124a, v{n}'); I(f'v_lshrrev_b32 v{t0}, 16, v{t0}')
    I(f'v_mul_u32_u24 v{t1}, 14, v{t0}'); I(f'v_sub_u32 v{t1}, v{n}, v{t1}')
    if ln is not None:
        I(f'v_and_b32 v{ln}, 3, v{t1}'); I(f'v_mul_u32_u24 v{ln}, 0x41, v{ln}'); I(f'v_and_b32 v{t2}, 3, v{t0}'); I(f'v_lshl_add_u32 v{ln}, v{t2}, 4, v{ln}')
        I(f'v_and_b32 v{t2}, 12, v{t1}'); I(f'v_add_u32 v{ln}, v{ln}, v{t2}'); I(f'v_lshrrev_b32 v{t2}, 2, v{t0}'); I(f'v_add_u32 v{ln}, v{ln}, v{t2}')
        I(f'v_lshlrev_b32 v{ln}, 3, v{ln}')
    if gl is not None:
        I(f'v_add_u32 v{t0}, s42, v{t0}'); I(f'v_mul_u32_u24 v{t0}, 0xe0, v{t0}'); I(f'v_add3_u32 v{t0}, v{t0}, v{t1}, s43')
        I(f'v_mul_lo_u32 v{gl}, v{t0}, s45')
I('v_and_b32 v8, 31, v1'); I('v_add_u32 v8, s47, v8')
pixaddr(8, 231, 230, 9, 20, 21)
I('v_lshrrev_b32 v6, 5, v1')
I(f'v_mul_u32_u24 v8, {6*OS}, v6'); I('v_add_u32 v231, v231, v8'); I(f'v_add_u32 v231, {XB}, v231')
I('v_mul_u32_u24 v8, 0x60, v6'); I('v_add_u32 v230, v230, v8')
I('s_and_b32 s47, s40, 1'); I('s_mul_i32 s47, s47, 6144'); I('s_cmp_lt_u32 s40, 4'); I('s_cselect_b32 s47, 0, s47')
I('v_lshl_add_u32 v8, v6, 2, v3'); I('v_lshlrev_b32 v8, 6, v8'); I('v_add_u32 v8, s47, v8')
I('v_bfe_u32 v9, v1, 4, 1')
I('v_lshlrev_b32 v20, 5, v9'); I('v_lshl_add_u32 v20, v2, 3, v20'); I('v_add_u32 v228, v8, v20')
I('v_and_b32 v20, 1, v2'); I('v_lshlrev_b32 v20, 5, v20'); I('v_lshl_add_u32 v20, v9, 4, v20')
I('v_lshrrev_b32 v21, 1, v2'); I('v_lshl_add_u32 v20, v21, 3, v20'); I('v_add_u32 v229, v8, v20'); I(f'v_add_u32 v229, {W2B}, v229')
I('v_and_b32 v8, 31, v1')
I('v_lshrrev_b32 v9, 3, v8'); I('v_lshlrev_b32 v9, 1, v9'); I('v_bfe_u32 v20, v8, 1, 1'); I('v_add_u32 v9, v9, v20')
I('v_bfe_u32 v20, v8, 2, 1'); I('v_cmp_eq_u32 vcc, v20, v6'); I('v_mov_b32 v21, 9'); I('v_cndmask_b32 v9, v21, v9, vcc')
I('s_cmp_eq_u32 s47, 0'); I('s_cselect_b32 s47, 0x3f80, 0')
I('v_and_b32 v20, 1, v8'); I('v_lshlrev_b32 v20, 4, v20'); I('v_lshlrev_b32 v20, v20, s47')
for k in range(8):
    I(f'v_cmp_eq_u32 vcc, {k}, v9'); I(f'v_cndmask_b32 v{232+k}, 0, v20, vcc')
I('v_add_u32 v8, 0xc0, v2'); pixaddr(8, 252, None, 9, 20, 21)
I('v_and_b32 v8, 1, v4'); I(f'v_mul_u32_u24 v8, {6*OS}, v8'); I('v_lshrrev_b32 v9, 1, v4'); I(f'v_mul_u32_u24 v9, {GS}, v9')
I('v_add3_u32 v252, v252, v8, v9'); I(f'v_add_u32 v252, {XB}, v252')
I('s_and_b32 s47, s40, 3'); I('s_mul_i32 s48, s47, 18432')
I('v_lshrrev_b32 v8, 2, v1'); I('v_lshlrev_b32 v8, 6, v8'); I('v_lshl_add_u32 v8, v2, 3, v8'); I('v_add_u32 v253, s48, v8'); I(f'v_add_u32 v254, {W2B}, v253')
I('s_add_u32 s48, s42, 13'); I('s_mul_i32 s48, s48, 224'); I('s_add_u32 s48, s48, s43'); I('s_add_u32 s48, s48, s47'); I('s_add_u32 s48, s48, 10'); I('s_mul_i32 s48, s48, 192')
I('v_lshlrev_b32 v8, 3, v1'); I('v_add_u32 v8, s48, v8'); I('v_cmp_gt_u32 vcc, 24, v1'); I('v_mov_b32 v9, s46'); I('v_cndmask_b32 v255, v9, v8, vcc')
stamp(2)

I('s_cmp_lt_u32 s40, 4'); I('s_cbranch_scc1 L_w8')
I('s_waitcnt vmcnt(12) lgkmcnt(0)'); I('s_branch L_w8e')
a.label('L_w8'); I('s_waitcnt vmcnt(8) lgkmcnt(0)')
a.label('L_w8e')
a.lq=[]; a.vq=[]
I('s_cmp_eq_u32 s40, 7'); I('s_cbranch_scc1 L_skipT')
cls=[(p,dq) for dq in range(2) for p in range(4)]+[(2,2),(3,2)]
tb=lambda p,dq: [0,29,43][dq]+7*p
tid=[]
for n,(p,dq) in enumerate(cls):
    tid.append(I(f'ds_read_b64_tr_b16 v[{32+2*n}:{33+2*n}], v16 offset:{(4*dq-p+3)*192}'))
for n,(p,dq) in enumerate(cls[0::2]):
    tid.append(I(f'ds_read_b64_tr_b16 v[{52+2*n}:{53+2*n}], v17 offset:{(4*dq-p-1+3)*192}'))
for n,(p,dq) in enumerate(cls):
    if n%4==0: a.wait_lgkm(tid[n+3])
    I(f'ds_write_b64 v24, v[{32+2*n}:{33+2*n}] offset:{tb(p,dq)*8}')
a.wait_lgkm(tid[14])
for n,(p,dq) in enumerate(cls[0::2]):
    I(f'ds_write_b64 v25, v[{52+2*n}:{53+2*n}] offset:{tb(p,dq)*8}')
a.label('L_skipT')
I('s_and_b32 s54, s40, 1'); I('s_mul_i32 s54, s54, 18432'); I('s_lshr_b32 s47, s40, 1'); I('s_lshl_b32 s47, s47, 6')
I('s_add_u32 s54, s54, s47')
for k in range(3):
    I('s_mov_b32 m0, s55')
    I(f's_add_u32 s55, s55, 1024')
    I('buffer_load_dwordx4 v18, s[24:27], s54 offen lds')
    I('s_add_u32 s54, s54, 6144')
stamp(3)
I('s_mov_b32 exec_hi, 0x0fffffff')
def transpose(src, off):
    for d in range(4):
        o=160+4*d
        I(f'v_perm_b32 v{o}, v{src+4+d}, v{src+d}, s56'); I(f'v_perm_b32 v{o+1}, v{src+12+d}, v{src+8+d}, s56')
        I(f'v_perm_b32 v{o+2}, v{src+4+d}, v{src+d}, s57'); I(f'v_perm_b32 v{o+3}, v{src+12+d}, v{src+8+d}, s57')
        for h in range(2):
            I(f'ds_write_b64 v26, v[{o+2*h}:{o+2*h+1}] offset:{off+d*1600+h*160}')
I('s_cmp_lt_u32 s40, 4'); I('s_cbranch_scc1 L_skipX2')
I('s_waitcnt vmcnt(11)'); transpose(96, 96)
a.label('L_skipX2')
I('s_waitcnt vmcnt(7)'); transpose(64, 0)
I('s_waitcnt vmcnt(3)'); transpose(80, 64)
I('s_mov_b64 exec, -1')
a.wait_all(vm=False)
I('s_barrier')
stamp(4)

NB=6
RING=[32+8*k for k in range(NB)]
DREG=lambda g,e: 80+16*(g%2)+4*e
steps=[(g,e,m) for g in range(3) for e in range(4) for m in range(4)]
ids={}
def conv_rB(n):
    g,e,m=steps[n]; r=RING[n%NB]
    I(f'ds_read_b128 v[{r+4}:{r+7}], v{BA[m]} offset:{g*4*OS+(e>>1)*1600+(e&1)*160}')
def conv_rA(n):
    g,e,m=steps[n]; r=RING[n%NB]
    ao=(g*32+e)*TCS
    I(f'ds_read_b64 v[{r}:{r+1}], v{AA[(m,0)]} offset:{ao}')
    ids[n]=I(f'ds_read_b64 v[{r+2}:{r+3}], v{AA[(m,1)]} offset:{ao}')
def conv_out(g):
    d=DREG(g,0)
    for p in range(4):
        o=160+2*p
        I(f'v_cvt_pk_bf16_f32 v{o}, v{d+p}, v{d+4+p}'); I(f'v_cvt_pk_bf16_f32 v{o+1}, v{d+8+p}, v{d+12+p}')
    for p in range(4):
        o=160+2*p
        I(f'ds_write_b64 v124, v[{o}:{o+1}] offset:{g*4*OS+p*520}')
LEAD=4
for n in range(LEAD): conv_rB(n); conv_rA(n)
xres=[]
for k in range(6):
    xres.append(I(f'buffer_load_dwordx4 v[{200+4*k}:{203+4*k}], v230, s[16:19], 0 offen offset:{16*k}'))
for n,(g,e,m) in enumerate(steps):
    if n+LEAD<len(steps): conv_rB(n+LEAD)
    a.wait_lgkm(ids[n])
    r=RING[n%NB]; d=DREG(g,e)
    I(f'v_mfma_f32_16x16x32_bf16 v[{d}:{d+3}], v[{r}:{r+3}], v[{r+4}:{r+7}], '+('0' if m==0 else f'v[{d}:{d+3}]'))
    if n+LEAD<len(steps): conv_rA(n+LEAD)
    if g>0 and e==0 and m==3: conv_out(g-1)
stamp(5)
conv_out(2)
a.wait_all()
I('s_barrier')
stamp(6)

H0=0; F1=24; F2=48; ACC=72; AS=120; TS=168; YB=216; HL=240
I('v_mov_b32 v227, v18'); I('v_mov_b32 v226, v19')
for s in range(6):
    I(f'ds_read_b64 v[{4*s}:{4*s+1}], v231 offset:{s*OS}')
    I(f'ds_read_b64 v[{4*s+2}:{4*s+3}], v231 offset:{s*OS+GS}')
for s in range(6):
    I(f'ds_read_b64 v[{HL+2*s}:{HL+2*s+1}], v252 offset:{s*OS}')
def trread(reg, addr, off, d2=512):
    I(f'ds_read_b64_tr_b16 v[{reg}:{reg+1}], v{addr} offset:{off}')
    return I(f'ds_read_b64_tr_b16 v[{reg+2}:{reg+3}], v{addr} offset:{off+d2}')
a.wait_all()
I('s_barrier')
I('s_mov_b32 s56, 0x3f803f80')

def layernorm(regs, red16, pair):
    t=AS
    for r in range(t,t+4): I(f'v_mov_b32 v{r}, 0')
    for n,d in enumerate(regs):
        I(f'v_dot2_f32_bf16 v{t+(n&1)}, v{d}, s56, v{t+(n&1)}')
        I(f'v_dot2_f32_bf16 v{t+2+(n&1)}, v{d}, v{d}, v{t+2+(n&1)}')
    I(f'v_add_f32 v{t}, v{t}, v{t+1}'); I(f'v_add_f32 v{t+2}, v{t+2}, v{t+3}')
    for sw in (['v_permlane16_swap_b32'] if red16 else [])+['v_permlane32_swap_b32']:
        I(f'v_mov_b32 v{t+1}, v{t}'); I(f'v_mov_b32 v{t+3}, v{t+2}')
        I(f'{sw} v{t}, v{t+1}'); I(f'{sw} v{t+2}, v{t+3}')
        I(f'v_add_f32 v{t}, v{t}, v{t+1}'); I(f'v_add_f32 v{t+2}, v{t+2}, v{t+3}')
    I(f'v_mul_f32 v{t}, {f32(1/96.)}, v{t}')
    I(f'v_mul_f32 v{t+2}, {f32(1/96.)}, v{t+2}')
    I(f'v_fma_f32 v{t+2}, -v{t}, v{t}, v{t+2}')
    I(f'v_max_f32 v{t+2}, 0, v{t+2}')
    I(f'v_add_f32 v{t+2}, {f32(1e-5)}, v{t+2}')
    I(f'v_rsq_f32 v{t+3}, v{t+2}')
    I(f'v_mul_f32 v{t+1}, {f32(SC)}, v{t+3}')
    I(f'v_cvt_pk_bf16_f32 v{t+4}, v{t+1}, 0')
    I(f'v_lshlrev_b32 v{t+5}, 16, v{t+4}')
    I(f'v_mul_f32 v{t+2}, v{t+2}, v{t+3}')
    I(f'v_mul_f32 v{pair+1}, v{t+2}, v{t+5}')
    I(f'v_rcp_f32 v{t+1}, v{pair+1}')
    I(f'v_mul_f32 v{t+6}, v{t}, v{t+5}'); I(f'v_sub_f32 v{t+6}, 0, v{t+6}')
    I(f'v_mul_f32 v{pair}, {f32(-K1)}, v{t+1}')
    for d0 in range(0,len(regs),4):
        for n in range(4):
            u=t+8+2*n; d=regs[d0+n]
            I(f'v_dot2_f32_bf16 v{u}, v{d}, v{t+4}, v{t+6}'); I(f'v_dot2_f32_bf16 v{u+1}, v{d}, v{t+5}, v{t+6}')
        for n in range(4):
            u=t+8+2*n
            I(f'v_cvt_pk_bf16_f32 v{regs[d0+n]}, v{u}, v{u+1}')

class U: pass
def unitM(idx, f1off, f2off):
    u=U(); u.k='M'; u.A=[AS+16*(idx%3)+k for k in range(16)]; u.T=[TS+16*(idx%3)+k for k in range(16)]
    u.pair=224; u.f1=f1off; u.f2=f2off; u.Y=[YB+k for k in range(8)]
    return u
def unitL():
    u=U(); u.k='L'; u.A=[AS+k for k in range(16)]+[H0+k for k in range(8)]; u.T=[TS+k for k in range(16)]+[H0+8+k for k in range(8)]
    u.pair=226; u.Y=[212+k for k in range(12)]
    return u
ACCL=136
G2LF=[F1+4*k for k in range(6)]+[184+4*k for k in range(4)]+[160,164]+[F2+4*k for k in range(6)]
fid={}
def f1L(n):
    t,ks=divmod(n,3); cc,hh=divmod(t,2)
    fid[('1L',n)]=trread(F1+4*(n%6), 253, cc*6144+2*ks*1024+hh*32, 1024)
def f2L(n):
    cc,r=divmod(n,6); o,hh=divmod(r,2)
    fid[('2L',n)]=trread(G2LF[n], 254, cc*6144+o*1024+hh*32, 3072)

def iteration(units, i, bar=True, hooks=None, last=False):
    hooks=hooks or {}
    N=len(units)
    g=lambda c: units[c] if 0<=c<N else None
    u1,ue,ur,u2=g(i+2),g(i+1),g(i),g(i-1)
    fill=[]
    if u2:
        for k,y in enumerate(u2.Y): fill.append((f'v_cvt_pk_bf16_f32 v{y}, v{u2.T[2*k]}, v{u2.T[2*k+1]}',4))
    tr=[]
    if ue: tr.append([f'v_exp_f32 v{r}, v{r}' for r in ue.T])
    if ur: tr.append([f'v_rcp_f32 v{r}, v{r}' for r in ur.T])
    for k in range(24):
        for l in tr:
            if k<len(l): fill.append((l[k],8))
    def filler(budget):
        while fill and budget>=fill[0][1]:
            t,c=fill.pop(0); I(t); budget-=c
    def flush_cvt():
        while fill and 'cvt' in fill[0][0]: I(fill.pop(0)[0])
    if bar: I('s_barrier')
    if 'start' in hooks: hooks['start']()
    nxt=g(i+3)
    def g1m(k):
        if k==0: a.wait_lgkm(fid[('1',5)])
        A_=u1.A[0]
        I(f'v_mfma_f32_32x32x16_bf16 v[{A_}:{A_+15}], v[{F1+4*k}:{F1+4*k+3}], v[{H0+4*k}:{H0+4*k+3}], '+('0' if k==0 else f'v[{A_}:{A_+15}]'))
        if nxt and nxt.k=='M': fid[('1',k)]=trread(F1+4*k,228,nxt.f1+k*1024)
        elif nxt: f1L(k)
        if 'g1' in hooks: hooks['g1'](k)
        filler(24)
    def g1l(n):
        t,ks=divmod(n,3); D=u1.A[4*t]
        if n%6==0: a.wait_lgkm(fid[('1L',n+5)])
        r=F1+4*(n%6)
        I(f'v_mfma_f32_16x16x32_bf16 v[{D}:{D+3}], v[{r}:{r+3}], v[{HL+4*ks}:{HL+4*ks+3}], '+('0' if ks==0 else f'v[{D}:{D+3}]'))
        if n+6<18: f1L(n+6)
        filler(8)
    order=[0,3,1,4,2,5] if last else [0,1,2,3,4,5]
    def g2m(kk):
        k=order[kk]; s2,o=divmod(k,3); C=ACC+16*o
        if kk==0: a.wait_lgkm(fid[('2',5)]); flush_cvt()
        I(f'v_mfma_f32_32x32x16_bf16 v[{C}:{C+15}], v[{F2+4*k}:{F2+4*k+3}], v[{u2.Y[4*s2]}:{u2.Y[4*s2+3]}], v[{C}:{C+15}]')
        if ur and ur.k=='M': fid[('2',k)]=trread(F2+4*k,229,ur.f2+k*1024)
        elif ur: f2L(12+k)
        if 'g2' in hooks: hooks['g2'](kk)
        filler(24)
    def gid(k):
        o,s2=divmod(k,2); C=ACC+16*o; X=200+8*o+4*s2
        I(f'v_mfma_f32_32x32x16_bf16 v[{C}:{C+15}], v[{232+4*s2}:{235+4*s2}], v[{X}:{X+3}], '+('0' if s2==0 else f'v[{C}:{C+15}]'))
        fid[('2',k)]=trread(F2+4*k,229,ur.f2+k*1024)
        filler(24)
    def g2l(n):
        cc,r=divmod(n,6); D=ACCL+4*r; F=G2LF[n]
        if n==0: flush_cvt()
        if n%6==0: a.wait_lgkm(fid[('2L',n+5)])
        I(f'v_mfma_f32_16x16x32_bf16 v[{D}:{D+3}], v[{F}:{F+3}], v[{u2.Y[4*cc]}:{u2.Y[4*cc+3]}], '+('0' if cc==0 else f'v[{D}:{D+3}]'))
        filler(8)
    if u1 and u1.k=='L':
        for n in range(6): g1l(n)
        for k in range(3): g2m(k)
        for n in range(6,12): g1l(n)
        for k in range(3,6): g2m(k)
        for n in range(12,18): g1l(n)
    else:
        if u1:
            for k in range(6): g1m(k)
        if i==0:
            for k in range(6): gid(k)
        elif u2 and u2.k=='M':
            for k in range(6): g2m(k)
        elif u2:
            for n in range(18): g2l(n)
    filler(10**6)
    if 'pk' in hooks: hooks['pk']()
    if u1:
        P=u1.pair
        for k in range(0,len(u1.A),2):
            A_,T_=u1.A[k],u1.T[k]
            I(f'v_pk_fma_f32 v[{T_}:{T_+1}], v[{A_}:{A_+1}], v[{A_}:{A_+1}], v[{P}:{P+1}] op_sel_hi:[1,1,0] neg_lo:[1,0,0] neg_hi:[1,0,0]')
        for k in range(0,len(u1.A),2):
            A_,T_=u1.A[k],u1.T[k]
            I(f'v_pk_mul_f32 v[{T_}:{T_+1}], v[{A_}:{A_+1}], v[{T_}:{T_+1}]')
    if ue:
        P=ue.pair
        for k in range(0,len(ue.T),2):
            T_=ue.T[k]
            I(f'v_pk_fma_f32 v[{T_}:{T_+1}], v[{T_}:{T_+1}], v[{P}:{P+1}], v[{P}:{P+1}] op_sel:[0,1,1]')
    if ur:
        for k in range(0,len(ur.A),2):
            A_,T_=ur.A[k],ur.T[k]
            I(f'v_pk_mul_f32 v[{T_}:{T_+1}], v[{A_}:{A_+1}], v[{T_}:{T_+1}]')
    if 'end' in hooks: hooks['end']()

I('s_cmp_ge_u32 s40, 4'); I('s_cbranch_scc1 L_B')
state0=(list(a.hist), list(a.lq), list(a.vq))
for k in range(6): fid[('1',k)]=trread(F1+4*k,228,k*1024)
layernorm(list(range(24)), False, 224)
stamp(7)
def aoff(c, bump): return c*6144-bump
unitsA=[unitM(c,0,0) for c in range(12)]
def setoffs(b):
    for c,u in enumerate(unitsA): u.f1=c*6144-b; u.f2=c*6144-b
setoffs(0)
iteration(unitsA,-2,bar=False); iteration(unitsA,-1,bar=False)
stamp(8)
iteration(unitsA,0)
I('s_mov_b32 s58, 0')
a.label('L_loop')
n0=len(a.lines)
def bump():
    I('v_add_u32 v228, 0x4800, v228'); I('v_add_u32 v229, 0x4800, v229')
unitsX=unitsA+[unitM(12,72*1024,72*1024)]
for i in (1,2,3): iteration(unitsX,i,hooks={'pk':bump} if i==3 else None)
I('s_add_u32 s58, s58, 1'); I('s_cmp_lt_u32 s58, 3'); I('s_cbranch_scc1 L_loop')
save=list(a.lines)
body1=a.lines[n0:]
n1=len(a.lines)
setoffs(18432)
for i in (4,5,6): iteration(unitsX,i,hooks={'pk':bump} if i==6 else None)
body2=a.lines[n1:]
assert body2==body1[:len(body2)], "loop body differs on second pass"
a.lines=save
setoffs(3*18432)
stamp(9)
iteration(unitsA,10); iteration(unitsA,11,bar=False)
stamp(10)
def epiA(kk):
    if kk in (3,5):
        o=(kk-3)//2; C=ACC+16*o; O=AS+8*o
        for k in range(8): I(f'v_cvt_pk_bf16_f32 v{O+k}, v{C+2*k}, v{C+2*k+1}')
        I(f'buffer_store_dwordx4 v[{O}:{O+3}], v230, s[32:35], 0 offen offset:{32*o}')
        I(f'buffer_store_dwordx4 v[{O+4}:{O+7}], v230, s[32:35], 0 offen offset:{32*o+16}')
iteration(unitsA,12,bar=False,hooks={'g2':epiA},last=True)
epiA(7) if False else None
C=ACC+32; O=AS+16
for k in range(8): I(f'v_cvt_pk_bf16_f32 v{O+k}, v{C+2*k}, v{C+2*k+1}')
I(f'buffer_store_dwordx4 v[{O}:{O+3}], v230, s[32:35], 0 offen offset:64')
I(f'buffer_store_dwordx4 v[{O+4}:{O+7}], v230, s[32:35], 0 offen offset:80')
stamp(11)
final_stamps()
I('s_endpgm')

a.label('L_B')
a.hist,a.lq,a.vq=list(state0[0]),list(state0[1]),list(state0[2])
I('v_mov_b32 v231, v227'); I('v_mov_b32 v252, v226')
I('s_and_b32 s47, s40, 3'); I('s_lshr_b32 s48, s47, 1'); I('s_and_b32 s49, s47, 1')
I('s_lshl_b32 s50, s48, 6'); I('s_mul_i32 s51, s49, 18432'); I('s_add_u32 s50, s50, s51')
I('s_mul_i32 s51, s47, 3072')
PAIRS=[(2,0),(1,4),(1,6),(2,2),(1,8),(1,10),(2,4),(2,6),(2,8),(2,10)]
dma={}
def dma_issue(P,k):
    w,c=PAIRS[P]
    if w==1:
        I(f's_add_u32 m0, s51, {c*6144+k*1024}'); I(f's_add_u32 s52, s50, {c*64+k*6144}')
        dma[(P,k)]=I('buffer_load_dwordx4 v231, s[24:27], s52 offen lds')
    else:
        I(f's_add_u32 m0, s51, {W2B+c*6144+k*1024}'); I(f's_add_u32 s52, s51, {c*6144+k*32}')
        dma[(P,k)]=I('buffer_load_dwordx4 v252, s[28:31], s52 offen lds')
for P in range(4):
    for k in range(3): dma_issue(P,k)
for k in range(6): fid[('1',k)]=trread(F1+4*k,228,k*1024)
stamp(7)
layernorm(list(range(24)), False, 224)
layernorm(list(range(HL,HL+12)), True, 226)
stamp(8)
unitsB=[unitM(u,u*12288,u*12288) for u in range(6)]+[unitL()]
unitsB[5].f1-=12288; unitsB[5].f2-=12288
NEED={0:0,1:1,2:3,3:4,4:6,5:7,6:8,7:9}
def exch_write():
    I('v_lshlrev_b32 v228, 4, v1' if False else 'v_mbcnt_lo_u32_b32 v228, -1, 0'); I('v_mbcnt_hi_u32_b32 v228, -1, v228')
    I('v_lshlrev_b32 v229, 4, v228')
    I('s_mul_i32 s52, s47, 6144'); I('s_xor_b32 s53, s47, 1'); I('s_mul_i32 s53, s53, 6144')
    I('v_add_u32 v231, s52, v229'); I('v_add_u32 v252, s53, v229')
    I('s_cmp_eq_u32 s49, 0'); I('s_cbranch_scc1 L_xe')
    for k in range(6): I(f'ds_write_b128 v231, v[{ACC+4*k}:{ACC+4*k+3}] offset:{1024*k}')
    I('s_branch L_xd')
    a.label('L_xe')
    a.lq=a.lq[:-6]
    for k in range(6): I(f'ds_write_b128 v231, v[{ACC+24+4*k}:{ACC+24+4*k+3}] offset:{1024*k}')
    a.label('L_xd')
    global xl
    xl=I('buffer_load_dwordx2 v[232:233], v255, s[16:19], 0 offen')
for j in range(-2,8):
    k=j+2
    if k in NEED: a.wait_vm(dma[(NEED[k],2)])
    hooks={}
    if j<=0: hooks['g1']=(lambda kk,j=j: dma_issue(4+2*(j+2)+kk//3, kk%3))
    if j==1: hooks['pk']=lambda: I('v_add_u32 v228, 0x3000, v228')
    if j==4: hooks['pk']=lambda: I('v_add_u32 v229, 0x3000, v229')
    if j==5: hooks['g2']=lambda kk: f2L(kk)
    if j==6: hooks['g2']=lambda kk: f2L(6+kk)
    if j==7: hooks['start']=exch_write
    iteration(unitsB,j,hooks=hooks)
    if j==0: stamp(9)
stamp(10)
I('v_and_b32 v0, 15, v228'); I('v_mul_u32_u24 v1, 0x180, v0'); I('v_lshrrev_b32 v2, 4, v228'); I('v_lshl_add_u32 v1, v2, 4, v1')
I('s_mul_i32 s52, s47, 1536'); I('s_add_u32 s52, s52, 24576'); I('v_add_u32 v1, s52, v1')
I('s_mov_b32 exec_lo, 0x000f000f'); I('s_mov_b32 exec_hi, 0x000f000f')
for r in range(6):
    o,hh=divmod(r,2)
    I(f'ds_write_b128 v1, v[{ACCL+4*r}:{ACCL+4*r+3}] offset:{(48*hh+16*o)*4}')
I('s_mov_b64 exec, -1')
I('s_mul_i32 s52, s47, 384'); I('s_add_u32 s52, s52, 24576'); I('v_min_u32 v2, 23, v228'); I('v_lshlrev_b32 v2, 4, v2'); I('v_add_u32 v2, s52, v2')
a.wait_all(vm=False)
I('s_barrier')
rd=[I(f'ds_read_b128 v[{AS+4*k}:{AS+4*k+3}], v252 offset:{1024*k}') for k in range(6)]
rl=[I(f'ds_read_b128 v[{TS+4*k}:{TS+4*k+3}], v2 offset:{1536*k}') for k in range(4)]
I('s_cmp_eq_u32 s49, 0'); I('s_cbranch_scc1 L_fe')
st=(list(a.hist), list(a.lq), list(a.vq))
def fin(base, off):
    for h in range(3):
        a.wait_lgkm(rd[2*h+1])
        for k in range(8): I(f'v_add_f32 v{base+8*h+k}, v{base+8*h+k}, v{AS+8*h+k}')
        for k in range(4): I(f'v_cvt_pk_bf16_f32 v{4*h+k+4}, v{base+8*h+2*k}, v{base+8*h+2*k+1}')
        I(f'buffer_store_dwordx4 v[{4*h+4}:{4*h+7}], v230, s[32:35], 0 offen offset:{off+16*h}')
fin(ACC+24,48)
I('s_branch L_fd')
a.label('L_fe')
a.hist,a.lq,a.vq=list(st[0]),list(st[1]),list(st[2])
fin(ACC,0)
a.label('L_fd')
a.wait_lgkm(rl[3]); a.wait_vm(xl)
I('v_lshlrev_b32 v16, 16, v232'); I('v_and_b32 v17, 0xffff0000, v232'); I('v_lshlrev_b32 v18, 16, v233'); I('v_and_b32 v19, 0xffff0000, v233')
for w in range(4):
    for k in range(4): I(f'v_add_f32 v{16+k}, v{16+k}, v{TS+4*w+k}')
I('v_cvt_pk_bf16_f32 v20, v16, v17'); I('v_cvt_pk_bf16_f32 v21, v18, v19')
I('buffer_store_dwordx2 v[20:21], v255, s[32:35], 0 offen')
stamp(11)
final_stamps()
a.label('L_end')

hdr=open('cdna_kernels/'+NAME+'.s.ref').read().split('\n')
top=[l for l in hdr if l.startswith(';') and '@launch' not in l and not l.startswith('; Override') and not l.startswith('; grid=')]
out='\n'.join(top)+f'\n; @launch grid=(256,1,1) block=(512,1,1) lds={LDSB}\n'
out+=f'''.amdgcn_target "amdgcn-amd-amdhsa--gfx950"
.text
.globl {NAME}_kernel
.p2align 8
.type {NAME}_kernel,@function
{NAME}_kernel:
'''+a.text()+f'''s_endpgm
.section .rodata,"a"
.p2align 6
.amdhsa_kernel {NAME}_kernel
  .amdhsa_next_free_vgpr 256
  .amdhsa_next_free_sgpr 102
  .amdhsa_accum_offset 256
  .amdhsa_group_segment_fixed_size 0
  .amdhsa_kernarg_size 56
  .amdhsa_user_sgpr_count 2
  .amdhsa_user_sgpr_kernarg_segment_ptr 1
  .amdhsa_system_sgpr_workgroup_id_x 1
.end_amdhsa_kernel
'''
open(sys.argv[1],'w').write(out)
print('nops inserted:',a.nops, 'instrs', len(a.hist))
if 'v' in DBG or len(sys.argv)>3:
    for r,t in a.noplog: print('  nop',r,'before',t)
```

```python
import sys, struct
from asmlib import *

DBG = sys.argv[2] if len(sys.argv)>2 else ''
NAME='standalone__convnext_block__vision'
XB=24576; GS=3200; OS=6416; TB=XB+12*OS; TCS=584; TEND=TB+96*TCS
EB=TB; RB=XB
LDSB=163840
def W1A(c): return c*6144 if c<4 else (EB+(c-4)*6144 if c<10 else RB+(c-10)*6144)
def W2A(c): return EB+(6+c)*6144 if c<4 else RB+(c-2)*6144
assert TEND<=LDSB and W2A(3)+6144<=LDSB
def f32(x): return '0x%08x'%struct.unpack('<I',struct.pack('<f',x))[0]
def u32(x): return '0x%x'%(x&0xffffffff)
K1=2.0*1.4426950408889634*0.7978845608028654
K3=K1*0.044715
SC=K3**(1.0/3.0)

a=Asm(); I=a.I
NST=13
def stamp(k):
    if 'T' not in DBG: return
    assert k<NST
    I(f's_memtime s[{60+2*k}:{61+2*k}]')
    I('s_waitcnt lgkmcnt(0)')
def dump(regs, slot=0, tmp=255):
    I('s_lshl_b32 s50, s2, 3'); I('s_add_u32 s50, s50, s40'); I('s_lshl_b32 s50, s50, 14')
    I(f'v_mbcnt_lo_u32_b32 v{tmp}, -1, 0'); I(f'v_mbcnt_hi_u32_b32 v{tmp}, -1, v{tmp}'); I(f'v_lshlrev_b32 v{tmp}, 2, v{tmp}')
    for k,r in enumerate(regs):
        I(f'buffer_store_dword v{r}, v{tmp}, s[36:39], s50 offen offset:{(slot+k)*256}')
    a.wait_all()
def final_stamps():
    if 'T' not in DBG: return
    a.wait_all(); stamp(NST-1)
    I('s_memrealtime s[88:89]'); I('s_waitcnt lgkmcnt(0)')
    for k in range(NST): I(f'v_mov_b32 v{k}, s{60+2*k}')
    I(f'v_mov_b32 v{NST}, s86'); I(f'v_mov_b32 v{NST+1}, s88')
    dump(range(NST+2))
def srd(d, p, n):
    I(f's_mov_b32 s{d}, s{p}'); I(f's_mov_b32 s{d+1}, s{p+1}'); I(f's_mov_b32 s{d+2}, {n}'); I(f's_mov_b32 s{d+3}, 0x00020000')
def lanemask(f):
    m=sum(1<<l for l in range(64) if f(l)); return m&0xffffffff, m>>32

if 'T' in DBG:
    I('s_memrealtime s[86:87]')
    for k in range(NST): I(f's_memtime s[{60+2*k}:{61+2*k}]')
I('s_load_dwordx8 s[4:11], s[0:1], 0')
I('s_load_dwordx2 s[12:13], s[0:1], 32')
if DBG: I('s_load_dwordx2 s[14:15], s[0:1], 48')
I('s_cmp_ge_u32 s2, 256')
I('s_cbranch_scc1 L_end')
I('v_lshrrev_b32 v2, 6, v0')
I('v_and_b32 v1, 63, v0')
I('v_readfirstlane_b32 s40, v2')
I('s_and_b32 s41, s2, 7'); I('s_lshl_b32 s41, s41, 5'); I('s_lshr_b32 s42, s2, 3'); I('s_add_u32 s41, s41, s42')
I('s_lshr_b32 s42, s41, 4'); I('s_and_b32 s43, s41, 15')
I('s_mul_i32 s42, s42, 14'); I('s_mul_i32 s43, s43, 14')
I('s_movk_i32 s45, 192')
I('s_mov_b32 s46, 0x40000000')
I('s_movk_i32 s49, 224')
I('s_mul_i32 s47, s40, 50'); I('v_add_u32 v2, s47, v1')
I('v_mul_u32_u24 v3, 0xccd, v2'); I('v_lshrrev_b32 v3, 16, v3')
I('v_mul_u32_u24 v4, 20, v3'); I('v_sub_u32 v4, v2, v4')
I('v_and_b32 v5, 3, v4'); I('v_and_b32 v6, 28, v4')
I('s_sub_u32 s44, s43, 3'); I('s_sub_u32 s47, s42, 3')
I('v_add_u32 v7, s47, v3'); I('v_add_u32 v8, s44, v6')
I('v_cmp_gt_u32 vcc, s49, v7')
I('v_mad_i32_i24 v9, v7, s49, v8'); I('v_lshlrev_b32 v2, 4, v5')
I('s_and_b32 vcc_hi, vcc_hi, 0x3ffff')
I('v_mad_i32_i24 v9, v9, s45, v2')
I('v_mov_b32 v4, 0x1000'); I('v_mov_b32 v15, s46')
I('v_cndmask_b32 v8, v4, v8, vcc')
I('v_lshlrev_b32 v14, 4, v1')
for k in range(4):
    if k: I(f'v_add_u32 v8, 1, v8')
    I(f'v_cmp_gt_u32_e64 s[{50+2*(k%2)}:{51+2*(k%2)}], s49, v8')
    if k: I(f'v_add_u32 v9, 0xc0, v9')
    else: I('s_mul_i32 s55, s40, 3072')
    I('s_add_u32 m0, s55, 576' if k==0 else ('s_mul_i32 s54, s40, 1344' if k==1 else 's_nop 0'))
    I(f'v_cndmask_b32_e64 v{10+k}, v15, v9, s[{50+2*(k%2)}:{51+2*(k%2)}]')
I(f'v_mul_u32_u24 v30, {OS}, v5'); I('v_mul_u32_u24 v6, 80, v6'); I('v_lshl_add_u32 v6, v3, 3, v6'); I(f'v_add_u32 v30, {XB}, v30'); I('v_add_u32 v30, v30, v6')
I('s_waitcnt lgkmcnt(0)')
srd(20,6,9408)
I('buffer_load_dwordx4 v14, s[20:23], s54 offen lds')
I('s_mov_b64 exec, 0xfffff')
dwid=I('buffer_load_dwordx4 v14, s[20:23], s54 offen offset:1024 lds')
I('s_mov_b64 exec, -1')
srd(16,4,9633792)
XS=lambda g: 128+16*g
xid={}
def xload(g):
    for k in range(4):
        r=XS(g)+4*k
        xid[g]=I(f'buffer_load_dwordx4 v[{r}:{r+3}], v{10+k}, s[16:19], 0 offen offset:{64*g}')
xload(0)
stamp(1)
for r in range(176,180): I(f'v_mov_b32 v{r}, 0')
I('v_add_u32 v15, s55, v14')
I('v_lshrrev_b32 v5, 1, v1'); I('s_mul_i32 s47, s40, 12'); I('v_add_u32 v5, s47, v5'); I(f'v_mul_u32_u24 v5, {TCS}, v5')
I('v_and_b32 v7, 1, v1'); I(f'v_mul_u32_u24 v7, {43*8}, v7'); I(f'v_add_u32 v5, v5, v7'); I(f'v_add_u32 v5, {TB}, v5')
I('s_mov_b64 exec, 0xffffff')
I(f'ds_write_b64 v5, v[176:177] offset:{28*8}')
I('s_mov_b32 exec_lo, -1'); I('s_mov_b32 exec_hi, 0xf')
I('ds_write_b128 v15, v[176:179]'); I('ds_write_b128 v15, v[176:179] offset:1920')
I('s_mov_b64 exec, -1')

SLOTS=[[(0,0),(1,0),(2,0),(3,0)],[(0,1),(1,1),(2,1),(4,1)],[(0,2),(1,2),(2,2),(3,2)],[(3,1),(4,0),(4,2),None]]
def pk(l,b): return sum(x<<(b*i) for i,x in enumerate(l))
I('v_and_b32 v2, 3, v1'); I('v_bfe_u32 v3, v1, 2, 2'); I('v_lshrrev_b32 v4, 4, v1')
I(f's_lshr_b32 s58, s40, 1'); I(f's_mul_i32 s58, s58, {OS}'); I('s_and_b32 s59, s40, 1'); I(f's_mul_i32 s59, s59, {GS}')
I('s_add_u32 s58, s58, s59'); I(f's_add_u32 s58, s58, {XB}')
I(f's_mul_i32 s59, s40, {4*TCS}'); I(f's_add_u32 s59, s59, {TB}')
I('s_movk_i32 s48, 0x140')
I('v_lshlrev_b32 v5, 3, v4')
I('v_lshlrev_b32 v6, 1, v3')
I('v_add_u32 v7, v6, v4'); I('v_lshl_add_u32 v7, v7, 4, s58')
I('v_mad_u32_u24 v16, v2, s48, v7')
I('v_add_u32 v8, 2, v2'); I('v_min_u32 v8, 4, v8'); I('v_mad_u32_u24 v18, v8, s48, v7')
I(f's_mov_b32 s47, 0x{pk([0,1,2,4],8):x}'); I(f's_mov_b32 s50, 0x{pk([3,4,4,1],8):x}'); I(f's_mov_b32 s51, 0x{pk([1,0,2,0],8):x}')
I('v_bfe_u32 v7, s47, v5, 8'); I('v_bfe_u32 v8, s50, v5, 8'); I('v_add_u32 v7, v7, v6'); I('v_add_u32 v8, v8, v6')
I('v_cmp_lt_u32 vcc, 9, v7'); I('v_cmp_lt_u32_e64 s[52:53], 9, v8')
I('v_bfe_u32 v9, s51, v5, 8'); I('v_add_u32 v9, v9, v2')
I('v_cndmask_b32_e64 v7, v7, 1, vcc'); I('v_cndmask_b32_e64 v8, v8, 2, s[52:53]')
I('v_min_u32 v9, 4, v9')
I('v_lshl_add_u32 v7, v7, 4, s58'); I('v_lshl_add_u32 v8, v8, 4, s58')
I('v_mad_u32_u24 v17, v2, s48, v7')
I('v_mad_u32_u24 v19, v9, s48, v8')
BA={0:16,1:17,2:18,3:19}; BOFF={0:0,1:320,2:0,3:0}
I('v_mul_u32_u24 v6, 7, v2'); I('v_sub_u32 v6, v6, v3')
I(f's_mov_b32 s47, 0x{pk([29,31,33,37],8):x}'); I(f's_mov_b32 s50, 0x{pk([35,8,51,28],8):x}')
I('v_lshl_add_u32 v7, v4, 1, v6'); I('v_lshl_add_u32 v7, v7, 3, s59')
I('v_bfe_u32 v8, s47, v5, 8'); I('v_add_u32 v8, v8, v6'); I('v_lshl_add_u32 v8, v8, 3, s59')
I('v_bfe_u32 v9, s50, v5, 8'); I('v_add_u32 v9, v9, v6'); I('v_lshl_add_u32 v9, v9, 3, s59')
I('s_add_u32 s47, s59, 224'); I('v_mov_b32 v5, s47'); I('v_add_u32 v6, -8, v5')
AA={}; AOFF={}
for m in range(4):
    for h in range(2):
        def valid(l):
            p=l&3; y=(l>>2)&3; s=SLOTS[m][l>>4]
            if s is None: return False
            if s[1]==2 and p<2: return False
            return 0<=2*s[0]+h-y<=6
        lo,hi=lanemask(valid)
        sp=50+2*((2*m+h)%2)
        I(f's_mov_b32 s{sp}, 0x{lo:x}'); I(f's_mov_b32 s{sp+1}, 0x{hi:x}')
        d=20+2*m+h; AA[(m,h)]=d; AOFF[(m,h)]=8*h+(344 if m==2 else 0)
        I(f'v_cndmask_b32_e64 v{d}, v{5+h}, v{[7,8,7,9][m]}, s[{sp}:{sp+1}]')
I('v_lshrrev_b32 v5, 1, v4'); I('v_sub_u32 v6, v3, v5'); I('v_mul_i32_i24 v6, 0xc0, v6'); I('v_lshl_add_u32 v6, v2, 3, v6')
I('v_and_b32 v7, 1, v4'); I('v_lshl_add_u32 v6, v7, 5, v6'); I('s_add_u32 s47, s55, 192'); I('v_add_u32 v28, s47, v6')
I('v_and_b32 v6, 31, v1'); I(f'v_mul_u32_u24 v6, {TCS}, v6'); I('v_mul_u32_u24 v5, 56, v5')
I('s_lshl_b32 s47, s40, 3'); I(f's_add_u32 s47, s47, {TB}'); I('v_add3_u32 v29, v5, v6, s47')
I('s_cmp_lt_u32 s40, 7'); I('s_cselect_b64 s[90:91], -1, 0')
I('s_mov_b32 s56, 0x05040100'); I('s_mov_b32 s57, 0x07060302')
xload(1)
srd(24,8,73728); srd(28,10,73728); srd(32,12,9633792)
if DBG: srd(36,14,268435456)
I('s_lshr_b32 s41, s40, 1'); I('s_add_u32 s41, s41, 2'); I('s_cmp_lt_u32 s40, 4'); I('s_cselect_b32 s41, s40, s41')
def pixaddr(n, ln, gl, t0, t1, t2):
    L=[f'v_mul_u32_u24 v{t0}, 0x124a, v{n}', f'v_lshrrev_b32 v{t0}, 16, v{t0}', f'v_mul_u32_u24 v{t1}, 14, v{t0}', f'v_sub_u32 v{t1}, v{n}, v{t1}']
    if ln is not None:
        L+=[f'v_and_b32 v{ln}, 3, v{t1}', f'v_mul_u32_u24 v{ln}, 0x41, v{ln}', f'v_and_b32 v{t2}, 3, v{t0}', f'v_lshl_add_u32 v{ln}, v{t2}, 4, v{ln}',
            f'v_and_b32 v{t2}, 12, v{t1}', f'v_add_u32 v{ln}, v{ln}, v{t2}', f'v_lshrrev_b32 v{t2}, 2, v{t0}', f'v_add_u32 v{ln}, v{ln}, v{t2}',
            f'v_lshlrev_b32 v{ln}, 3, v{ln}']
    if gl is not None:
        L+=[f'v_add_u32 v{t0}, s42, v{t0}', f'v_mul_u32_u24 v{t0}, 0xe0, v{t0}', f'v_add3_u32 v{t0}, v{t0}, v{t1}, s43', f'v_mul_lo_u32 v{gl}, v{t0}, s45']
    return L
def outaddr(l16, gm, ge, t0, sa, sb):
    I(f's_lshl_b32 s{sa}, s41, 1'); I(f's_add_u32 s{sa}, s{sa}, s42'); I(f's_mul_i32 s{sa}, s{sa}, 224'); I(f's_add_u32 s{sa}, s{sa}, s43'); I(f's_mul_i32 s{sa}, s{sa}, 192')
    I(f'v_add_u32 v{gm}, s{sa}, v{l16}'); I(f'v_mov_b32 v{t0}, s46')
    I(f'v_cmp_gt_u32 vcc, {56*16}, v{l16}')
    I(f's_add_u32 s{sa}, s42, 12'); I(f's_mul_i32 s{sa}, s{sa}, 224'); I(f's_add_u32 s{sa}, s{sa}, s43')
    I(f'v_cndmask_b32 v{gm}, v{t0}, v{gm}, vcc')
    I(f's_lshl_b32 s{sb}, s41, 2'); I(f's_add_u32 s{sa}, s{sa}, s{sb}'); I(f's_mul_i32 s{sa}, s{sa}, 192')
    I(f's_sub_u32 s{sb}, 14, s{sb}'); I(f's_max_i32 s{sb}, s{sb}, 0'); I(f's_mul_i32 s{sb}, s{sb}, 192')
    I(f'v_add_u32 v{ge}, s{sa}, v{l16}'); I(f'v_cmp_le_u32 vcc, s{sb}, v{l16}')
    I(f'v_add_u32 v{t0}, {210*192}, v{ge}'); I('s_nop 0')
    I(f'v_cndmask_b32 v{ge}, v{ge}, v{t0}, vcc')
    I(f'v_cmp_gt_u32 vcc, {48*16}, v{l16}'); I(f'v_mov_b32 v{t0}, s46'); I('s_nop 0')
    I(f'v_cndmask_b32 v{ge}, v{t0}, v{ge}, vcc')
SA=W2A(4)
I('s_cmp_ge_u32 s40, 4'); I('s_cbranch_scc1 L_setB')
I('s_mul_i32 s47, s40, 6144'); I(f's_add_u32 s47, s47, {SA}'); I('v_add_u32 v241, s47, v14')
I('v_and_b32 v5, 31, v1'); I('v_mul_u32_u24 v5, 0xc0, v5'); I('v_lshrrev_b32 v6, 5, v1'); I('v_mul_u32_u24 v6, 0x60, v6'); I('v_add3_u32 v240, v5, v6, s47')
outaddr(14,242,243,5,47,48)
I('s_branch L_setE')
a.label('L_setB')
I('v_add_u32 v8, 0xc0, v2')
for t in pixaddr(8, 252, None, 9, 5, 6): I(t)
I('v_and_b32 v8, 1, v4'); I(f'v_mul_u32_u24 v8, {6*OS}, v8'); I('v_lshrrev_b32 v9, 1, v4'); I(f'v_mul_u32_u24 v9, {GS}, v9')
I('v_add3_u32 v252, v252, v8, v9'); I(f'v_add_u32 v252, {XB}, v252')
I('s_and_b32 s47, s40, 3'); I('s_mul_i32 s48, s47, 6144')
I('v_lshrrev_b32 v8, 2, v1'); I('v_lshlrev_b32 v8, 6, v8'); I('v_lshl_add_u32 v8, v2, 3, v8'); I('v_add_u32 v253, s48, v8'); I(f'v_add_u32 v254, {W2A(0)}, v253')
I('s_add_u32 s48, s42, 13'); I('s_mul_i32 s48, s48, 224'); I('s_add_u32 s48, s48, s43'); I('s_add_u32 s48, s48, s47'); I('s_add_u32 s48, s48, 10'); I('s_mul_i32 s48, s48, 192')
I('v_lshlrev_b32 v8, 3, v1'); I('v_add_u32 v8, s48, v8'); I('v_cmp_gt_u32 vcc, 24, v1'); I('v_mov_b32 v9, s46'); I('s_nop 0'); I('v_cndmask_b32 v255, v9, v8, vcc')
a.label('L_setE')
stamp(2)

F=[]
def fill(*l): F.append(list(l))
def fills(l):
    for t in l: fill(t)
fills(['v_and_b32 v5, 1, v4','v_mul_u32_u24 v5, 48, v5','v_lshrrev_b32 v6, 5, v1','v_lshl_add_u32 v5, v6, 2, v5','v_add_u32 v5, v5, v3',
       'v_mul_u32_u24 v5, 0x300, v5','v_lshl_add_u32 v227, v2, 4, v5',
       'v_lshrrev_b32 v5, 2, v1','v_mul_u32_u24 v5, 0xc0, v5','v_and_b32 v6, 1, v2','v_lshl_add_u32 v5, v6, 4, v5','v_lshrrev_b32 v6, 1, v2',
       'v_mul_u32_u24 v6, 0x60, v6','v_add_u32 v226, v5, v6',
       's_and_b32 s54, s40, 1','s_mul_i32 s54, s54, 18432','s_lshr_b32 s47, s40, 1','s_lshl_b32 s47, s47, 6','s_add_u32 s54, s54, s47'])
fills(['s_mul_i32 s47, s41, 28','s_lshl_b32 s48, s41, 2','s_add_u32 s48, s48, 140','v_and_b32 v5, 31, v1','v_add_u32 v6, s47, v5','v_add_u32 v7, s48, v5',
       'v_cmp_gt_u32 vcc, 28, v5','v_lshrrev_b32 v15, 5, v1','s_and_b32 s44, s40, 1','v_cndmask_b32 v5, v7, v6, vcc'])
fills(pixaddr(5, 231, 230, 6, 7, 8))
fill('s_cmp_lt_u32 s40, 4','s_cselect_b32 s44, 0, s44')
fills([f'v_mul_u32_u24 v8, {6*OS}, v15','v_add_u32 v231, v231, v8',f'v_add_u32 v231, {XB}, v231','v_mul_u32_u24 v8, 0x60, v15','v_add_u32 v230, v230, v8',
       's_lshl_b32 s47, s44, 30','v_or_b32 v230, s47, v230'])
NB_FILL=len(F)
fills(['s_mul_i32 s47, s44, 6144','v_lshl_add_u32 v8, v15, 2, v3','v_lshlrev_b32 v8, 6, v8','v_add_u32 v8, s47, v8','v_and_b32 v9, 1, v4',
       'v_lshlrev_b32 v5, 5, v9','v_lshl_add_u32 v5, v2, 3, v5','v_add_u32 v228, v8, v5',
       'v_and_b32 v5, 1, v2','v_lshlrev_b32 v5, 5, v5','v_lshl_add_u32 v5, v9, 4, v5','v_lshrrev_b32 v6, 1, v2','v_lshl_add_u32 v5, v6, 3, v5',
       'v_add_u32 v229, v8, v5',f'v_add_u32 v229, {W2A(0)}, v229'])
G=['v_mbcnt_lo_u32_b32 v72, -1, 0','v_mbcnt_hi_u32_b32 v72, -1, v72','v_lshrrev_b32 v73, 5, v72',
   'v_bfe_u32 v74, v72, 3, 2','v_lshlrev_b32 v74, 1, v74','v_bfe_u32 v75, v72, 1, 1','v_add_u32 v74, v74, v75','v_bfe_u32 v75, v72, 2, 1','v_cmp_eq_u32 vcc, v75, v73',
   'v_mov_b32 v76, 9','v_and_b32 v75, 1, v72','v_cndmask_b32 v74, v76, v74, vcc','v_lshlrev_b32 v75, 4, v75','v_lshlrev_b32 v75, v75, s98']
for k in range(0,8,2):
    G+=[f'v_cmp_eq_u32 vcc, {k}, v74', f'v_cmp_eq_u32_e64 s[52:53], {k+1}, v74', 's_nop 0', f'v_cndmask_b32 v{232+k}, 0, v75, vcc', f'v_cndmask_b32_e64 v{233+k}, 0, v75, s[52:53]']
fill('s_cmp_eq_u32 s44, 0','s_cselect_b32 s98, 0x3f80, 0')
def ghook(GL):
    def h(k):
        for _ in range(6 if k is not None else 99):
            if GL: I(GL.pop(0))
    return {'g1':h,'pk':lambda: h(None)}
fills(['v_lshlrev_b32 v5, 4, v4','v_lshl_add_u32 v5, v2, 2, v5','v_add_u32 v5, v5, v3','v_lshl_add_u32 v31, v5, 3, s58','v_add_u32 v15, s58, v14',
       f'v_mul_u32_u24 v5, {OS}, v4','v_bfe_u32 v6, v1, 3, 1',f'v_mul_u32_u24 v6, {GS}, v6',f'v_add_u32 v5, {XB+2080}, v5','v_add_u32 v5, v5, v6',
       'v_and_b32 v6, 7, v1','s_lshl_b32 s47, s40, 7','v_lshl_add_u32 v0, v6, 4, v5','v_add_u32 v0, s47, v0','v_lshl_add_u32 v9, v6, 5, v5',
       'v_lshlrev_b32 v8, 5, v6','v_lshl_add_u32 v8, v4, 2, v8',f's_add_u32 s47, s58, {8*OS+2080}','v_add_u32 v8, s47, v8'])
print('fillers',len(F), 'first part',NB_FILL); NF_ALL=len(F)

cls=[(0,0),(2,0),(0,1),(2,1),(2,2)]
tb=lambda p,dq: [0,29,43][dq]+7*p
tid={}
def t_read(g):
    for n,(p,dq) in enumerate(cls):
        tid[g]=I(f'ds_read_b64_tr_b16 v[{176+2*n}:{177+2*n}], v28 offset:{(4*dq-p+2)*192+64*g}')
def t_write(g):
    a.wait_lgkm(tid[g])
    I('s_mov_b64 exec, s[90:91]')
    for n,(p,dq) in enumerate(cls):
        I(f'ds_write_b64 v29, v[{176+2*n}:{177+2*n}] offset:{tb(p,dq)*8+g*32*TCS}')
    I('s_mov_b64 exec, -1')
wid={}
def transpose(g,d):
    src=XS(g); o=176+4*d
    I(f'v_perm_b32 v{o}, v{src+4+d}, v{src+d}, s56'); I(f'v_perm_b32 v{o+1}, v{src+12+d}, v{src+8+d}, s56')
    I(f'v_perm_b32 v{o+2}, v{src+4+d}, v{src+d}, s57'); I(f'v_perm_b32 v{o+3}, v{src+12+d}, v{src+8+d}, s57')
    I('s_mov_b32 exec_hi, 0x3ffff')
    for h in range(2):
        wid[g]=I(f'ds_write_b64 v30, v[{o+2*h}:{o+2*h+1}] offset:{g*4*OS+d*1600+h*160}')
    I('s_mov_b32 exec_hi, -1')
a.wait_vm(dwid); a.wait_all(vm=False)
t_read(0); t_write(0)
stamp(3)
a.wait_vm(xid[0])
for d in range(4): transpose(0,d)
xload(2)
a.wait_all(vm=False)
I('s_barrier')
stamp(4)

def dma(lds, src, w):
    I(f's_add_u32 m0, s55, {u32(lds)}')
    if w==1:
        I(f's_add_u32 s52, s54, {u32(src)}'); return I('buffer_load_dwordx4 v227, s[24:27], s52 offen lds')
    I(f's_add_u32 s52, s55, {u32(src)}'); return I('buffer_load_dwordx4 v226, s[28:31], s52 offen lds')
NB=6
RING=[32+8*k for k in range(NB)]
DREG=lambda g,e: 80+16*g+4*e
steps=[(g,e,m) for g in range(3) for e in range(4) for m in range(4)]
ids={}
def conv_rB(n):
    g,e,m=steps[n]; r=RING[n%NB]
    I(f'ds_read_b128 v[{r+4}:{r+7}], v{BA[m]} offset:{g*4*OS+(e>>1)*1600+(e&1)*160+BOFF[m]}')
def conv_rA(n):
    g,e,m=steps[n]; r=RING[n%NB]
    ao=(g*32+e)*TCS
    I(f'ds_read_b64 v[{r}:{r+1}], v{AA[(m,0)]} offset:{ao+AOFF[(m,0)]}')
    ids[n]=I(f'ds_read_b64 v[{r+2}:{r+3}], v{AA[(m,1)]} offset:{ao+AOFF[(m,1)]}')
SR=192; QR=196
def stats(g):
    L=[]
    for e in range(4):
        for p in range(4):
            d=DREG(g,e)+p
            if g==0 and e==0: L.append(f'v_mul_f32 v{QR+p}, v{d}, v{d}')
            else: L.append(f'v_fmac_f32 v{QR+p}, v{d}, v{d}')
            if g==0 and e==0: pass
            elif g==0 and e==1: L.append(f'v_add_f32 v{SR+p}, v{d-4}, v{d}')
            else: L.append(f'v_add_f32 v{SR+p}, v{SR+p}, v{d}')
    return L
extras={n:[] for n in range(48)}
pre={}
xres=[]; pf=[]
for g in range(2):
    b=16*g
    extras[b+0].append(lambda g=g: t_read(g+1))
    extras[b+2].append(lambda g=g: t_write(g+1))
    extras[b+7].append(lambda g=g: a.wait_vm(xid[g+1]))
    for d in range(4): extras[b+7+d].append(lambda g=g,d=d: transpose(g+1,d))
    pre[b+12]=lambda g=g: (a.wait_lgkm(wid[g+1]), I('s_barrier'))
for k in range(3): extras[16+4+k].append(lambda k=k: pf.append(dma(1024*k, 6144*k, 1)))
for k in range(6): extras[38+k].append(lambda k=k: xres.append(I(f'buffer_load_dwordx4 v[{200+4*k}:{203+4*k}], v230, s[16:19], 0 offen offset:{16*k}')))
LEAD=4
for n in range(LEAD): conv_rB(n); conv_rA(n)
st=[]
for n,(g,e,m) in enumerate(steps):
    if n in pre: pre[n]()
    if n+LEAD<len(steps): conv_rB(n+LEAD)
    a.wait_lgkm(ids[n])
    r=RING[n%NB]; d=DREG(g,e)
    I(f'v_mfma_f32_16x16x32_bf16 v[{d}:{d+3}], v[{r}:{r+3}], v[{r+4}:{r+7}], '+('0' if m==0 else f'v[{d}:{d+3}]'))
    if n+LEAD<len(steps): conv_rA(n+LEAD)
    for f in extras[n]: f()
    if n in (17,33): st+=stats(g-1)
    busy=bool(extras[n]) and not (n>=32)
    nf=0 if busy else 3
    if n>=16:
        for _ in range(2 if busy else 3):
            if st: I(st.pop(0))
        nf=0 if busy else (2 if n<32 else 3)
    for _ in range(nf):
        if F:
            for t in F.pop(0): I(t)
    if n==19: assert NF_ALL-len(F)>=19
    if n==37: assert NF_ALL-len(F)>=NB_FILL
assert not st
print('fillers left after conv',len(F))
stamp(5)
for f in F:
    for t in f: I(t)
for e in range(4):
    d=DREG(2,e)
    for h in (0,2):
        I(f'v_pk_add_f32 v[{SR+h}:{SR+h+1}], v[{SR+h}:{SR+h+1}], v[{d+h}:{d+h+1}]')
        I(f'v_pk_fma_f32 v[{QR+h}:{QR+h+1}], v[{d+h}:{d+h+1}], v[{d+h}:{d+h+1}], v[{QR+h}:{QR+h+1}]')
I(f'ds_write_b128 v15, v[{SR}:{SR+3}] offset:2080')
I(f'ds_write_b128 v15, v[{QR}:{QR+3}] offset:{4*OS+2080}')
a.wait_all(vm=False)
I('s_barrier')
stamp(6)
I('ds_read_b128 v[32:35], v0'); r1=I(f'ds_read_b128 v[36:39], v0 offset:{4*OS}')
e1=[dma(W1A(4)+1024*k, 256+6144*k, 1) for k in range(3)]
a.wait_lgkm(r1)
for x,y in ((32,34),(33,35),(36,38),(37,39)): I(f'v_permlane32_swap_b32 v{x}, v{y}')
for x,y in ((32,34),(33,35),(36,38),(37,39)): I(f'v_add_f32 v{x}, v{x}, v{y}')
I('v_permlane16_swap_b32 v32, v33'); I('v_permlane16_swap_b32 v36, v37')
I('v_add_f32 v32, v32, v33'); I('v_add_f32 v36, v36, v37')
I('v_add_f32_dpp v32, v32, v32 row_ror:8 row_mask:0xf bank_mask:0xf'); I('v_add_f32_dpp v36, v36, v36 row_ror:8 row_mask:0xf bank_mask:0xf')
I(f'v_mul_f32 v32, {f32(1/96.)}, v32')
I(f'v_mul_f32 v36, {f32(1/96.)}, v36')
I('v_fma_f32 v36, -v32, v32, v36')
I('v_max_f32 v36, 0, v36')
I(f'v_add_f32 v36, {f32(1e-5)}, v36')
I('v_rsq_f32 v36, v36')
I(f'v_mul_f32 v36, {f32(SC)}, v36')
I('v_mul_f32 v32, v32, v36'); I('v_sub_f32 v32, 0, v32')
I('ds_write2_b32 v8, v36, v32 offset0:0 offset1:4')
a.wait_all(vm=False)
I('s_barrier')
I(f'ds_read_b128 v[40:43], v9 offset:{8*OS}'); r2=I(f'ds_read_b128 v[44:47], v9 offset:{8*OS+16}')
e2=[dma(W2A(0)+1024*k, 32*k, 2) for k in range(3)]
I(f's_mov_b32 s92, {f32(-K1/SC)}'); I('s_mov_b32 s93, s92'); I(f's_mov_b32 s94, {f32(SC)}'); I('s_mov_b32 s95, s94')
a.wait_lgkm(r2)
for g in range(3):
    for e in range(4):
        d=DREG(g,e)
        for h in (0,2): I(f'v_pk_fma_f32 v[{d+h}:{d+h+1}], v[{d+h}:{d+h+1}], v[{40+h}:{41+h}], v[{44+h}:{45+h}]')
    d=DREG(g,0)
    for p in range(4):
        o=48+8*g+2*p
        I(f'v_cvt_pk_bf16_f32 v{o}, v{d+p}, v{d+4+p}'); I(f'v_cvt_pk_bf16_f32 v{o+1}, v{d+8+p}, v{d+12+p}')
        I(f'ds_write_b64 v31, v[{o}:{o+1}] offset:{g*4*OS+p*520}')
a.wait_vm(pf[2])
a.wait_all(vm=False)
I('s_barrier')
stamp(7)

H0=0; F1=24; F2=48; ACC=72; AS=120; TS=168; YB=216; HL=240
hid=[]
for s in range(6):
    I(f'ds_read_b64 v[{4*s}:{4*s+1}], v231 offset:{s*OS}')
    hid.append(I(f'ds_read_b64 v[{4*s+2}:{4*s+3}], v231 offset:{s*OS+GS}'))
base={228:0, 229:W2A(0), 253:0, 254:0}
def rel(reg, ab):
    d=ab-base[reg]
    if d<0 or d>59000:
        I(f'v_add_u32 v{reg}, {u32(d)}, v{reg}'); base[reg]=ab; d=0
    return d
def trread(reg, addr, off, d2=512):
    I(f'ds_read_b64_tr_b16 v[{reg}:{reg+1}], v{addr} offset:{off}')
    return I(f'ds_read_b64_tr_b16 v[{reg+2}:{reg+3}], v{addr} offset:{off+d2}')
fid={}
for k in range(6): fid[('1',k)]=trread(F1+4*k,228,k*1024)

class U: pass
def unitM(idx, f1, f2):
    u=U(); u.k='M'; u.A=[AS+16*(idx%3)+k for k in range(16)]; u.T=[TS+16*(idx%3)+k for k in range(16)]
    u.f1=f1; u.f2=f2; u.Y=[YB+k for k in range(8)]
    return u
def unitL():
    u=U(); u.k='L'; u.A=[AS+k for k in range(16)]+[H0+k for k in range(8)]; u.T=[TS+k for k in range(16)]+[H0+8+k for k in range(8)]
    u.Y=[212+k for k in range(12)]
    return u
ACCL=136
G2LF=[F1+4*k for k in range(6)]+[184+4*k for k in range(4)]+[160,164]+[F2+4*k for k in range(6)]
def f1L(n):
    t,ks=divmod(n,3); cc,hh=divmod(t,2)
    if n==6: I(f'v_add_u32 v253, {EB}, v253')
    if n==12: I('v_add_u32 v253, s96, v253')
    fid[('1L',n)]=trread(F1+4*(n%6), 253, 2*ks*1024+hh*32, 1024)
def f2L(n):
    cc,r=divmod(n,6); o,hh=divmod(r,2)
    if n==12: I(f'v_add_u32 v254, {u32(W2A(4)-W2A(0))}, v254')
    fid[('2L',n)]=trread(G2LF[n], 254, (24576 if cc==2 else 0)+o*1024+hh*32, 3072)

def iteration(units, i, bar=True, hooks=None, last=False):
    hooks=hooks or {}
    N=len(units)
    g=lambda c: units[c] if 0<=c<N else None
    u1,ue,ur,u2=g(i+2),g(i+1),g(i),g(i-1)
    fill=[]
    if u2:
        for k,y in enumerate(u2.Y): fill.append((f'v_cvt_pk_bf16_f32 v{y}, v{u2.T[2*k]}, v{u2.T[2*k+1]}',4))
    tr=[]
    if ue: tr.append([f'v_exp_f32 v{r}, v{r}' for r in ue.T])
    if ur: tr.append([f'v_rcp_f32 v{r}, v{r}' for r in ur.T])
    for k in range(24):
        for l in tr:
            if k<len(l): fill.append((l[k],8))
    def filler(budget):
        while fill and budget>=fill[0][1]:
            t,c=fill.pop(0); I(t); budget-=c
    def flush_cvt():
        while fill and 'cvt' in fill[0][0]: I(fill.pop(0)[0])
    if bar: I('s_barrier')
    if 'start' in hooks: hooks['start']()
    nxt=g(i+3)
    def g1m(k):
        if k==0: a.wait_lgkm(fid[('1',5)])
        A_=u1.A[0]
        I(f'v_mfma_f32_32x32x16_bf16 v[{A_}:{A_+15}], v[{F1+4*k}:{F1+4*k+3}], v[{H0+4*k}:{H0+4*k+3}], '+('0' if k==0 else f'v[{A_}:{A_+15}]'))
        if nxt and nxt.k=='M': fid[('1',k)]=trread(F1+4*k,228,rel(228,nxt.f1)+k*1024)
        elif nxt: f1L(k)
        if 'g1' in hooks: hooks['g1'](k)
        filler(24)
    def g1l(n):
        t,ks=divmod(n,3); D=u1.A[4*t]
        if n%6==0: a.wait_lgkm(fid[('1L',n+5)])
        r=F1+4*(n%6)
        I(f'v_mfma_f32_16x16x32_bf16 v[{D}:{D+3}], v[{r}:{r+3}], v[{HL+4*ks}:{HL+4*ks+3}], '+('0' if ks==0 else f'v[{D}:{D+3}]'))
        if n+6<18: f1L(n+6)
        filler(8)
    order=[0,3,1,4,2,5] if last else [0,1,2,3,4,5]
    def g2m(kk):
        k=order[kk]; s2,o=divmod(k,3); C=ACC+16*o
        if kk==0: a.wait_lgkm(fid[('2',5)]); flush_cvt()
        I(f'v_mfma_f32_32x32x16_bf16 v[{C}:{C+15}], v[{F2+4*k}:{F2+4*k+3}], v[{u2.Y[4*s2]}:{u2.Y[4*s2+3]}], v[{C}:{C+15}]')
        if ur and ur.k=='M': fid[('2',k)]=trread(F2+4*k,229,rel(229,ur.f2)+k*1024)
        elif ur: f2L(12+k)
        if 'g2' in hooks: hooks['g2'](kk)
        filler(24)
    def gid(k):
        o,s2=divmod(k,2); C=ACC+16*o; X=200+8*o+4*s2
        I(f'v_mfma_f32_32x32x16_bf16 v[{C}:{C+15}], v[{232+4*s2}:{235+4*s2}], v[{X}:{X+3}], '+('0' if s2==0 else f'v[{C}:{C+15}]'))
        fid[('2',k)]=trread(F2+4*k,229,rel(229,ur.f2)+k*1024)
        filler(24)
    def g2l(n):
        cc,r=divmod(n,6); D=ACCL+4*r; F_=G2LF[n]
        if n==0: flush_cvt()
        if n%6==0: a.wait_lgkm(fid[('2L',n+5)])
        I(f'v_mfma_f32_16x16x32_bf16 v[{D}:{D+3}], v[{F_}:{F_+3}], v[{u2.Y[4*cc]}:{u2.Y[4*cc+3]}], '+('0' if cc==0 else f'v[{D}:{D+3}]'))
        filler(8)
    if u1 and u1.k=='L':
        for n in range(6): g1l(n)
        for k in range(3): g2m(k)
        for n in range(6,12): g1l(n)
        for k in range(3,6): g2m(k)
        for n in range(12,18): g1l(n)
    else:
        if u1:
            for k in range(6): g1m(k)
        if i==0:
            for k in range(6): gid(k)
        elif u2 and u2.k=='M':
            for k in range(6): g2m(k)
        elif u2:
            for n in range(18): g2l(n)
    filler(10**6)
    if 'pk' in hooks: hooks['pk']()
    if ur:
        for k in range(0,len(ur.A),2):
            A_,T_=ur.A[k],ur.T[k]
            I(f'v_pk_mul_f32 v[{T_}:{T_+1}], v[{A_}:{A_+1}], v[{T_}:{T_+1}]')
    if ue:
        for k in range(0,len(ue.T),2):
            T_=ue.T[k]
            I(f'v_pk_fma_f32 v[{T_}:{T_+1}], v[{T_}:{T_+1}], s[94:95], s[94:95]')
    if u1:
        for k in range(0,len(u1.A),2):
            A_,T_=u1.A[k],u1.T[k]
            I(f'v_pk_fma_f32 v[{T_}:{T_+1}], v[{A_}:{A_+1}], v[{A_}:{A_+1}], s[92:93] neg_lo:[1,0,0] neg_hi:[1,0,0]')
        for k in range(0,len(u1.A),2):
            A_,T_=u1.A[k],u1.T[k]
            I(f'v_pk_mul_f32 v[{T_}:{T_+1}], v[{A_}:{A_+1}], v[{T_}:{T_+1}]')
    if 'end' in hooks: hooks['end']()

I('s_cmp_ge_u32 s40, 4'); I('s_cbranch_scc1 L_B')
state0=(list(a.hist), list(a.lq), list(a.vq), dict(base), dict(fid))
e3=[dma(W1A(8)+1024*k, 512+6144*k, 1) for k in range(3)]
unitsA=[unitM(c,W1A(c),W2A(c)) for c in range(12)]
I('s_movk_i32 s96, 0x4800'); I(f's_mov_b32 s97, {u32(W2A(4)-W2A(1))}')
iteration(unitsA,-2,bar=False,hooks=ghook(list(G)))
stamp(8)
a.wait_vm(e1[2])
iteration(unitsA,-1)
a.wait_all(lgkm=False)
iteration(unitsA,0,hooks={'pk':lambda: rel(228,EB)})
I('s_mov_b32 s58, 0')
a.label('L_loop')
n0=len(a.lines)
def bump():
    I('v_add_u32 v228, s96, v228'); I('v_add_u32 v229, s97, v229')
    I(f's_mov_b32 s96, {u32(RB-EB-18432)}'); I('s_movk_i32 s97, 0x4800')
unitsX=unitsA+[unitM(12,RB+2*6144,0)]
for i in (1,2,3): iteration(unitsX,i,hooks={'pk':bump} if i==3 else None)
I('s_add_u32 s58, s58, 1'); I('s_cmp_lt_u32 s58, 3'); I('s_cbranch_scc1 L_loop')
save=list(a.lines)
body1=a.lines[n0:]
for ps,(b1,b2) in enumerate(((W1A(7),W2A(4)-6144),(W1A(10),W2A(7)-6144))):
    n1=len(a.lines)
    base[228]=b1; base[229]=b2
    for i in (4+3*ps,5+3*ps,6+3*ps): iteration(unitsX,i,hooks={'pk':bump} if i%3==0 else None)
    body2=a.lines[n1:]
    assert body2==body1[:len(body2)], "loop body differs on later pass"
a.lines=save
base[229]=W2A(10)-6144
stamp(9)
iteration(unitsA,10,bar=False); iteration(unitsA,11,bar=False)
stamp(10)
def epiA(kk):
    if kk in (3,5,7):
        o=(kk-3)//2; C=ACC+16*o; O=AS+8*o
        for k in range(8): I(f'v_cvt_pk_bf16_f32 v{O+k}, v{C+2*k}, v{C+2*k+1}')
        I(f'ds_write_b128 v240, v[{O}:{O+3}] offset:{32*o}')
        I(f'ds_write_b128 v240, v[{O+4}:{O+7}] offset:{32*o+16}')
iteration(unitsA,12,bar=False,hooks={'g2':epiA},last=True)
epiA(7)
I('s_mov_b32 s47, 43008')
rd=[I(f'ds_read_b128 v[{TS+4*j}:{TS+4*j+3}], v241 offset:{896*j}') for j in range(7)]
for j in range(7):
    a.wait_lgkm(rd[j])
    if j<6: I(f'buffer_store_dwordx4 v[{TS+4*j}:{TS+4*j+3}], v242, s[32:35], {"s47" if j>=3 else "0"} offen offset:{896*(j%3)}')
    else: I(f'buffer_store_dwordx4 v[{TS+4*j}:{TS+4*j+3}], v243, s[32:35], 0 offen')
stamp(11)
final_stamps()
I('s_endpgm')

a.label('L_B')
a.hist,a.lq,a.vq=list(state0[0]),list(state0[1]),list(state0[2]); base.update(state0[3]); fid.clear(); fid.update(state0[4])
for s in range(6):
    hl=I(f'ds_read_b64 v[{HL+2*s}:{HL+2*s+1}], v252 offset:{s*OS}')
I('s_and_b32 s47, s40, 3'); I('s_and_b32 s49, s47, 1')
I('s_movk_i32 s96, 0x6000')
I('s_cmp_ge_u32 s47, 2'); I(f's_cmov_b32 s96, {u32(RB-EB-12288)}')
LATE=[(1,10),(2,4),(2,6),(2,8),(2,10)]
dm={}
def dma_late(P,k):
    w,c=LATE[P]
    if w==1: dm[(P,k)]=dma(W1A(c)-12288+1024*k, c*64-128+6144*k, 1)
    else: dm[(P,k)]=dma(W2A(c)-12288+1024*k, c*6144-12288+32*k, 2)
unitsB=[unitM(u,W1A(2*u),W2A(2*u)) for u in range(6)]+[unitL()]
PB=lambda pr: EB if pr==0 else 0
EXL=EB+24576
def exch_write():
    I('v_mbcnt_lo_u32_b32 v228, -1, 0'); I('v_mbcnt_hi_u32_b32 v228, -1, v228')
    I('v_lshlrev_b32 v229, 4, v228')
    I('s_cmp_lt_u32 s47, 2'); I(f's_cselect_b32 s52, {EB}, 0')
    I('s_mul_i32 s53, s49, 12288'); I('s_add_u32 s53, s53, s52')
    I('v_and_b32 v230, 31, v228'); I('v_mul_u32_u24 v230, 0xc0, v230'); I('v_lshrrev_b32 v231, 5, v228'); I('v_mul_u32_u24 v231, 0x60, v231')
    I('v_add3_u32 v231, v230, v231, s53')
    for o in range(3):
        for rq in range(4):
            C=ACC+16*o+4*rq
            I(f'ds_write_b128 v231, v[{C}:{C+3}] offset:{(rq&1)*6144+(2*o+(rq>>1))*16}')
    global xl
    xl=I('buffer_load_dwordx2 v[232:233], v255, s[16:19], 0 offen')
    I('s_mul_i32 s53, s49, 2688'); I('s_add_u32 s53, s53, s52'); I('v_add_u32 v252, s53, v229')
    I('v_add_u32 v253, s52, v229')
    outaddr(229,234,235,230,52,53)
    I('s_mul_i32 s48, s49, 43008')
for j in range(-2,8):
    if j==-1: a.wait_vm(e1[2]); a.wait_lgkm(hl)
    if j==0: a.wait_vm(e2[2])
    if j==2: a.wait_vm(dm[(1,2)])
    if j in (3,4,5): a.wait_vm(dm[(j-1,2)])
    hooks={}
    if j==-2: hooks=ghook(list(G))
    if j in (-1,0): hooks['g1']=(lambda kk,j=j: dma_late(2*(j+1)+kk//3, kk%3))
    if j==1: hooks['g1']=(lambda kk: dma_late(4,kk) if kk<3 else None)
    if j==5: hooks['g2']=lambda kk: f2L(kk)
    if j==6: hooks['g2']=lambda kk: f2L(6+kk)
    if j==7: hooks['start']=exch_write
    iteration(unitsB,j,bar=(j>-2),hooks=hooks)
    if j==-2: stamp(8)
    if j==0: stamp(9)
stamp(10)
I('v_and_b32 v0, 15, v228'); I('v_mul_u32_u24 v1, 0x180, v0'); I('v_lshrrev_b32 v2, 4, v228'); I('v_lshl_add_u32 v1, v2, 4, v1')
I('s_mul_i32 s52, s47, 1536'); I(f's_add_u32 s52, s52, {EXL}'); I('v_add_u32 v1, s52, v1')
I('s_mov_b32 exec_lo, 0x000f000f'); I('s_mov_b32 exec_hi, 0x000f000f')
for r in range(6):
    o,hh=divmod(r,2)
    I(f'ds_write_b128 v1, v[{ACCL+4*r}:{ACCL+4*r+3}] offset:{(48*hh+16*o)*4}')
I('s_mov_b64 exec, -1')
I('s_mul_i32 s52, s47, 384'); I(f's_add_u32 s52, s52, {EXL}'); I('v_min_u32 v2, 23, v228'); I('v_lshlrev_b32 v2, 4, v2'); I('v_add_u32 v2, s52, v2')
a.wait_all(vm=False)
I('s_barrier')
def rd4(reg, addr, off):
    for q in range(4):
        r=I(f'ds_read_b128 v[{reg+4*q}:{reg+4*q+3}], v{addr} offset:{off+(q>>1)*12288+(q&1)*6144}')
    return r
def fin(reg, out):
    for k in range(0,8,2): I(f'v_pk_add_f32 v[{reg+k}:{reg+k+1}], v[{reg+k}:{reg+k+1}], v[{reg+8+k}:{reg+9+k}]')
    for k in range(4): I(f'v_cvt_pk_bf16_f32 v{out+k}, v{reg+2*k}, v{reg+2*k+1}')
rd=[rd4(ACC+16*j,252,896*j) for j in range(3)]
rl=[I(f'ds_read_b128 v[{TS+4*k}:{TS+4*k+3}], v2 offset:{1536*k}') for k in range(4)]
for j in range(3):
    a.wait_lgkm(rd[j]); fin(ACC+16*j, 4+4*j)
    I(f'buffer_store_dwordx4 v[{4+4*j}:{7+4*j}], v234, s[32:35], s48 offen offset:{896*j}')
a.wait_lgkm(rl[3]); a.wait_vm(xl)
I('v_lshlrev_b32 v16, 16, v232'); I('v_and_b32 v17, 0xffff0000, v232'); I('v_lshlrev_b32 v18, 16, v233'); I('v_and_b32 v19, 0xffff0000, v233')
for w in range(4):
    for k in (0,2): I(f'v_pk_add_f32 v[{16+k}:{17+k}], v[{16+k}:{17+k}], v[{TS+4*w+k}:{TS+4*w+k+1}]')
I('v_cvt_pk_bf16_f32 v20, v16, v17'); I('v_cvt_pk_bf16_f32 v21, v18, v19')
I('buffer_store_dwordx2 v[20:21], v255, s[32:35], 0 offen')
I('s_cmp_lg_u32 s49, 0'); I('s_cbranch_scc1 L_bd')
r=rd4(AS,253,5376); a.wait_lgkm(r); fin(AS,24)
I('buffer_store_dwordx4 v[24:27], v235, s[32:35], 0 offen')
a.label('L_bd')
I('s_barrier')
stamp(11)
final_stamps()
a.label('L_end')

hdr=open('cdna_kernels/'+NAME+'.s.ref').read().split('\n')
top=[l for l in hdr if l.startswith(';') and '@launch' not in l and not l.startswith('; Override') and not l.startswith('; grid=')]
out='\n'.join(top)+f'\n; @launch grid=(256,1,1) block=(512,1,1) lds={LDSB}\n'
out+=f'''.amdgcn_target "amdgcn-amd-amdhsa--gfx950"
.text
.globl {NAME}_kernel
.p2align 8
.type {NAME}_kernel,@function
{NAME}_kernel:
'''+a.text()+f'''s_endpgm
.section .rodata,"a"
.p2align 6
.amdhsa_kernel {NAME}_kernel
  .amdhsa_next_free_vgpr 256
  .amdhsa_next_free_sgpr 102
  .amdhsa_accum_offset 256
  .amdhsa_group_segment_fixed_size 0
  .amdhsa_kernarg_size 56
  .amdhsa_user_sgpr_count 2
  .amdhsa_user_sgpr_kernarg_segment_ptr 1
  .amdhsa_system_sgpr_workgroup_id_x 1
.end_amdhsa_kernel
'''
open(sys.argv[1],'w').write(out)
print('nops inserted:',a.nops, 'instrs', len(a.hist))
if 'v' in DBG or len(sys.argv)>3:
    for r,t in a.noplog: print('  nop',r,'before',t)
```

```python
import sys, struct
from asmlib import *

DBG = sys.argv[2] if len(sys.argv)>2 else ''
NAME='standalone__convnext_block__vision'
XB=24576; GS=3200; OS=6416; TB=XB+12*OS; TCS=584; TEND=TB+96*TCS
EB=TB; RB=XB
LDSB=163840
def W1A(c): return c*6144 if c<4 else (EB+(c-4)*6144 if c<10 else RB+(c-10)*6144)
def W2A(c): return EB+(6+c)*6144 if c<4 else RB+(c-2)*6144
assert TEND<=LDSB and W2A(3)+6144<=LDSB
def f32(x): return '0x%08x'%struct.unpack('<I',struct.pack('<f',x))[0]
def u32(x): return '0x%x'%(x&0xffffffff)
K1=2.0*1.4426950408889634*0.7978845608028654
K3=K1*0.044715
SC=K3**(1.0/3.0)

a=Asm(); I=a.I
NST=13
nlab=0
HW=8*100+(4 if '4' in DBG else 0)
def stamp(k):
    if 'T' not in DBG: return
    assert k<NST
    I(f's_memtime s[{60+2*k}:{61+2*k}]')
    I('s_waitcnt lgkmcnt(0)')
def dump(regs, slot=0, tmp=255):
    I('s_lshl_b32 s50, s2, 3'); I('s_add_u32 s50, s50, s40'); I('s_lshl_b32 s50, s50, 14')
    I(f'v_mbcnt_lo_u32_b32 v{tmp}, -1, 0'); I(f'v_mbcnt_hi_u32_b32 v{tmp}, -1, v{tmp}'); I(f'v_lshlrev_b32 v{tmp}, 2, v{tmp}')
    for k,r in enumerate(regs):
        I(f'buffer_store_dword v{r}, v{tmp}, s[36:39], s50 offen offset:{(slot+k)*256}')
    a.wait_all()
def final_stamps():
    if 'T' not in DBG: return
    a.wait_all(); stamp(NST-1)
    I('s_memrealtime s[88:89]'); I('s_waitcnt lgkmcnt(0)')
    if 'H' in DBG:
        I('s_mov_b64 exec, 1')
        I('s_not_b32 s86, s86'); I('v_mov_b32 v0, s86'); I('v_mov_b32 v1, s88'); I('v_mov_b32 v2, 0')
        I('buffer_atomic_umax v0, v2, s[36:39], 0 offen'); I('buffer_atomic_umax v1, v2, s[36:39], 0 offen offset:4')
        I('s_lshl_b32 s50, s2, 3'); I('s_add_u32 s50, s50, s40'); I(f's_cmp_lg_u32 s50, {HW}')
        global nlab
        nlab+=1
        I(f's_cbranch_scc1 L_h{nlab}')
        for k in range(1,NST):
            I(f's_sub_u32 s50, s{60+2*k}, s60'); I('v_mov_b32 v0, s50'); I(f'buffer_store_dword v0, v2, s[36:39], 0 offen offset:{4+4*k}')
        a.label(f'L_h{nlab}')
        a.wait_all()
        return
    for k in range(NST): I(f'v_mov_b32 v{k}, s{60+2*k}')
    I(f'v_mov_b32 v{NST}, s86'); I(f'v_mov_b32 v{NST+1}, s88')
    dump(range(NST+2))
def srd(d, p, n):
    I(f's_mov_b32 s{d}, s{p}'); I(f's_mov_b32 s{d+1}, s{p+1}'); I(f's_mov_b32 s{d+2}, {n}'); I(f's_mov_b32 s{d+3}, 0x00020000')
def lanemask(f):
    m=sum(1<<l for l in range(64) if f(l)); return m&0xffffffff, m>>32

if 'T' in DBG:
    I('s_memrealtime s[86:87]')
    for k in range(NST): I(f's_memtime s[{60+2*k}:{61+2*k}]')
I('s_load_dwordx8 s[4:11], s[0:1], 0')
I('s_load_dwordx2 s[12:13], s[0:1], 32')
if DBG: I(f's_load_dwordx2 s[14:15], s[0:1], {40 if "H" in DBG else 48}')
I('s_cmp_ge_u32 s2, 256')
I('s_cbranch_scc1 L_end')
I('v_lshrrev_b32 v2, 6, v0')
I('v_and_b32 v1, 63, v0')
I('v_readfirstlane_b32 s40, v2')
I('s_and_b32 s41, s2, 7'); I('s_lshl_b32 s41, s41, 5'); I('s_lshr_b32 s42, s2, 3'); I('s_add_u32 s41, s41, s42')
I('s_lshr_b32 s42, s41, 4'); I('s_and_b32 s43, s41, 15')
I('s_mul_i32 s42, s42, 14'); I('s_mul_i32 s43, s43, 14')
I('s_movk_i32 s45, 192')
I('s_mov_b32 s46, 0x40000000')
I('s_movk_i32 s49, 224')
I('s_mul_i32 s47, s40, 50'); I('v_add_u32 v2, s47, v1')
I('v_mul_u32_u24 v3, 0xccd, v2'); I('v_lshrrev_b32 v3, 16, v3')
I('v_mul_u32_u24 v4, 20, v3'); I('v_sub_u32 v4, v2, v4')
I('v_and_b32 v5, 3, v4'); I('v_and_b32 v6, 28, v4')
I('s_sub_u32 s44, s43, 3'); I('s_sub_u32 s47, s42, 3')
I('v_add_u32 v7, s47, v3'); I('v_add_u32 v8, s44, v6')
I('v_cmp_gt_u32 vcc, s49, v7')
I('v_mad_i32_i24 v9, v7, s49, v8'); I('v_lshlrev_b32 v2, 4, v5')
I('s_and_b32 vcc_hi, vcc_hi, 0x3ffff')
I('v_mad_i32_i24 v9, v9, s45, v2')
I('v_mov_b32 v4, 0x1000'); I('v_mov_b32 v15, s46')
I('v_cndmask_b32 v8, v4, v8, vcc')
I('v_lshlrev_b32 v14, 4, v1')
for k in range(4):
    if k: I(f'v_add_u32 v8, 1, v8')
    I(f'v_cmp_gt_u32_e64 s[{50+2*(k%2)}:{51+2*(k%2)}], s49, v8')
    if k: I(f'v_add_u32 v9, 0xc0, v9')
    else: I('s_mul_i32 s55, s40, 3072')
    I('s_add_u32 m0, s55, 576' if k==0 else ('s_mul_i32 s54, s40, 1344' if k==1 else 's_nop 0'))
    I(f'v_cndmask_b32_e64 v{10+k}, v15, v9, s[{50+2*(k%2)}:{51+2*(k%2)}]')
I(f'v_mul_u32_u24 v30, {OS}, v5'); I('v_mul_u32_u24 v6, 80, v6'); I('v_lshl_add_u32 v6, v3, 3, v6'); I(f'v_add_u32 v30, {XB}, v30'); I('v_add_u32 v30, v30, v6')
I('s_waitcnt lgkmcnt(0)')
srd(20,6,9408)
I('buffer_load_dwordx4 v14, s[20:23], s54 offen lds')
I('s_mov_b64 exec, 0xfffff')
dwid=I('buffer_load_dwordx4 v14, s[20:23], s54 offen offset:1024 lds')
I('s_mov_b64 exec, -1')
srd(16,4,9633792)
XS=lambda g: 128+16*g
xid={}
def xload(g):
    for k in range(4):
        r=XS(g)+4*k
        xid[g]=I(f'buffer_load_dwordx4 v[{r}:{r+3}], v{10+k}, s[16:19], 0 offen offset:{64*g}')
xload(0)
stamp(1)
for r in range(176,180): I(f'v_mov_b32 v{r}, 0')
I('v_add_u32 v15, s55, v14')
I('v_lshrrev_b32 v5, 1, v1'); I('s_mul_i32 s47, s40, 12'); I('v_add_u32 v5, s47, v5'); I(f'v_mul_u32_u24 v5, {TCS}, v5')
I('v_and_b32 v7, 1, v1'); I(f'v_mul_u32_u24 v7, {43*8}, v7'); I(f'v_add_u32 v5, v5, v7'); I(f'v_add_u32 v5, {TB}, v5')
I('s_mov_b64 exec, 0xffffff')
I(f'ds_write_b64 v5, v[176:177] offset:{28*8}')
I('s_mov_b32 exec_lo, -1'); I('s_mov_b32 exec_hi, 0xf')
I('ds_write_b128 v15, v[176:179]'); I('ds_write_b128 v15, v[176:179] offset:1920')
I('s_mov_b64 exec, -1')

SLOTS=[[(0,0),(1,0),(2,0),(3,0)],[(0,1),(1,1),(2,1),(4,1)],[(0,2),(1,2),(2,2),(3,2)],[(3,1),(4,0),(4,2),None]]
def pk(l,b): return sum(x<<(b*i) for i,x in enumerate(l))
I('v_and_b32 v2, 3, v1'); I('v_bfe_u32 v3, v1, 2, 2'); I('v_lshrrev_b32 v4, 4, v1')
I(f's_lshr_b32 s58, s40, 1'); I(f's_mul_i32 s58, s58, {OS}'); I('s_and_b32 s59, s40, 1'); I(f's_mul_i32 s59, s59, {GS}')
I('s_add_u32 s58, s58, s59'); I(f's_add_u32 s58, s58, {XB}')
I(f's_mul_i32 s59, s40, {4*TCS}'); I(f's_add_u32 s59, s59, {TB}')
I('s_movk_i32 s48, 0x140')
I('v_lshlrev_b32 v5, 3, v4')
I('v_lshlrev_b32 v6, 1, v3')
I('v_add_u32 v7, v6, v4'); I('v_lshl_add_u32 v7, v7, 4, s58')
I('v_mad_u32_u24 v16, v2, s48, v7')
I('v_add_u32 v8, 2, v2'); I('v_min_u32 v8, 4, v8'); I('v_mad_u32_u24 v18, v8, s48, v7')
I(f's_mov_b32 s47, 0x{pk([0,1,2,4],8):x}'); I(f's_mov_b32 s50, 0x{pk([3,4,4,1],8):x}'); I(f's_mov_b32 s51, 0x{pk([1,0,2,0],8):x}')
I('v_bfe_u32 v7, s47, v5, 8'); I('v_bfe_u32 v8, s50, v5, 8'); I('v_add_u32 v7, v7, v6'); I('v_add_u32 v8, v8, v6')
I('v_cmp_lt_u32 vcc, 9, v7'); I('v_cmp_lt_u32_e64 s[52:53], 9, v8')
I('v_bfe_u32 v9, s51, v5, 8'); I('v_add_u32 v9, v9, v2')
I('v_cndmask_b32_e64 v7, v7, 1, vcc'); I('v_cndmask_b32_e64 v8, v8, 2, s[52:53]')
I('v_min_u32 v9, 4, v9')
I('v_lshl_add_u32 v7, v7, 4, s58'); I('v_lshl_add_u32 v8, v8, 4, s58')
I('v_mad_u32_u24 v17, v2, s48, v7')
I('v_mad_u32_u24 v19, v9, s48, v8')
BA={0:16,1:17,2:18,3:19}; BOFF={0:0,1:320,2:0,3:0}
I('v_mul_u32_u24 v6, 7, v2'); I('v_sub_u32 v6, v6, v3')
I(f's_mov_b32 s47, 0x{pk([29,31,33,37],8):x}'); I(f's_mov_b32 s50, 0x{pk([35,8,51,28],8):x}')
I('v_lshl_add_u32 v7, v4, 1, v6'); I('v_lshl_add_u32 v7, v7, 3, s59')
I('v_bfe_u32 v8, s47, v5, 8'); I('v_add_u32 v8, v8, v6'); I('v_lshl_add_u32 v8, v8, 3, s59')
I('v_bfe_u32 v9, s50, v5, 8'); I('v_add_u32 v9, v9, v6'); I('v_lshl_add_u32 v9, v9, 3, s59')
I('s_add_u32 s47, s59, 224'); I('v_mov_b32 v5, s47'); I('v_add_u32 v6, -8, v5')
AA={}; AOFF={}
for m in range(4):
    for h in range(2):
        def valid(l):
            p=l&3; y=(l>>2)&3; s=SLOTS[m][l>>4]
            if s is None: return False
            if s[1]==2 and p<2: return False
            return 0<=2*s[0]+h-y<=6
        lo,hi=lanemask(valid)
        sp=50+2*((2*m+h)%2)
        I(f's_mov_b32 s{sp}, 0x{lo:x}'); I(f's_mov_b32 s{sp+1}, 0x{hi:x}')
        d=20+2*m+h; AA[(m,h)]=d; AOFF[(m,h)]=8*h+(344 if m==2 else 0)
        I(f'v_cndmask_b32_e64 v{d}, v{5+h}, v{[7,8,7,9][m]}, s[{sp}:{sp+1}]')
I('v_lshrrev_b32 v5, 1, v4'); I('v_sub_u32 v6, v3, v5'); I('v_mul_i32_i24 v6, 0xc0, v6'); I('v_lshl_add_u32 v6, v2, 3, v6')
I('v_and_b32 v7, 1, v4'); I('v_lshl_add_u32 v6, v7, 5, v6'); I('s_add_u32 s47, s55, 192'); I('v_add_u32 v28, s47, v6')
I('v_and_b32 v6, 31, v1'); I(f'v_mul_u32_u24 v6, {TCS}, v6'); I('v_mul_u32_u24 v5, 56, v5')
I('s_lshl_b32 s47, s40, 3'); I(f's_add_u32 s47, s47, {TB}'); I('v_add3_u32 v29, v5, v6, s47')
I('s_cmp_lt_u32 s40, 7'); I('s_cselect_b64 s[90:91], -1, 0')
I('s_mov_b32 s56, 0x05040100'); I('s_mov_b32 s57, 0x07060302')
xload(1)
srd(24,8,73728); srd(28,10,73728); srd(32,12,9633792)
if DBG: srd(36,14,256 if 'H' in DBG else 268435456)
I('s_lshr_b32 s41, s40, 1'); I('s_add_u32 s41, s41, 2'); I('s_cmp_lt_u32 s40, 4'); I('s_cselect_b32 s41, s40, s41')
def pixaddr(n, ln, gl, t0, t1, t2):
    L=[f'v_mul_u32_u24 v{t0}, 0x124a, v{n}', f'v_lshrrev_b32 v{t0}, 16, v{t0}', f'v_mul_u32_u24 v{t1}, 14, v{t0}', f'v_sub_u32 v{t1}, v{n}, v{t1}']
    if ln is not None:
        L+=[f'v_and_b32 v{ln}, 3, v{t1}', f'v_mul_u32_u24 v{ln}, 0x41, v{ln}', f'v_and_b32 v{t2}, 3, v{t0}', f'v_lshl_add_u32 v{ln}, v{t2}, 4, v{ln}',
            f'v_and_b32 v{t2}, 12, v{t1}', f'v_add_u32 v{ln}, v{ln}, v{t2}', f'v_lshrrev_b32 v{t2}, 2, v{t0}', f'v_add_u32 v{ln}, v{ln}, v{t2}',
            f'v_lshlrev_b32 v{ln}, 3, v{ln}']
    if gl is not None:
        L+=[f'v_add_u32 v{t0}, s42, v{t0}', f'v_mul_u32_u24 v{t0}, 0xe0, v{t0}', f'v_add3_u32 v{t0}, v{t0}, v{t1}, s43', f'v_mul_lo_u32 v{gl}, v{t0}, s45']
    return L
def outaddr(l16, gm, ge, t0, sa, sb):
    I(f's_lshl_b32 s{sa}, s41, 1'); I(f's_add_u32 s{sa}, s{sa}, s42'); I(f's_mul_i32 s{sa}, s{sa}, 224'); I(f's_add_u32 s{sa}, s{sa}, s43'); I(f's_mul_i32 s{sa}, s{sa}, 192')
    I(f'v_add_u32 v{gm}, s{sa}, v{l16}'); I(f'v_mov_b32 v{t0}, s46')
    I(f'v_cmp_gt_u32 vcc, {56*16}, v{l16}')
    I(f's_add_u32 s{sa}, s42, 12'); I(f's_mul_i32 s{sa}, s{sa}, 224'); I(f's_add_u32 s{sa}, s{sa}, s43')
    I(f'v_cndmask_b32 v{gm}, v{t0}, v{gm}, vcc')
    I(f's_lshl_b32 s{sb}, s41, 2'); I(f's_add_u32 s{sa}, s{sa}, s{sb}'); I(f's_mul_i32 s{sa}, s{sa}, 192')
    I(f's_sub_u32 s{sb}, 14, s{sb}'); I(f's_max_i32 s{sb}, s{sb}, 0'); I(f's_mul_i32 s{sb}, s{sb}, 192')
    I(f'v_add_u32 v{ge}, s{sa}, v{l16}'); I(f'v_cmp_le_u32 vcc, s{sb}, v{l16}')
    I(f'v_add_u32 v{t0}, {210*192}, v{ge}'); I('s_nop 0')
    I(f'v_cndmask_b32 v{ge}, v{ge}, v{t0}, vcc')
    I(f'v_cmp_gt_u32 vcc, {48*16}, v{l16}'); I(f'v_mov_b32 v{t0}, s46'); I('s_nop 0')
    I(f'v_cndmask_b32 v{ge}, v{t0}, v{ge}, vcc')
SA=W2A(4)
I('s_cmp_ge_u32 s40, 4'); I('s_cbranch_scc1 L_setB')
I('s_mul_i32 s47, s40, 6144'); I(f's_add_u32 s47, s47, {SA}'); I('v_add_u32 v241, s47, v14')
I('v_and_b32 v5, 31, v1'); I('v_mul_u32_u24 v5, 0xc0, v5'); I('v_lshrrev_b32 v6, 5, v1'); I('v_mul_u32_u24 v6, 0x60, v6'); I('v_add3_u32 v240, v5, v6, s47')
outaddr(14,242,243,5,47,48)
I('s_branch L_setE')
a.label('L_setB')
I('v_add_u32 v8, 0xc0, v2')
for t in pixaddr(8, 252, None, 9, 5, 6): I(t)
I('v_and_b32 v8, 1, v4'); I(f'v_mul_u32_u24 v8, {6*OS}, v8'); I('v_lshrrev_b32 v9, 1, v4'); I(f'v_mul_u32_u24 v9, {GS}, v9')
I('v_add3_u32 v252, v252, v8, v9'); I(f'v_add_u32 v252, {XB}, v252')
I('s_and_b32 s47, s40, 3'); I('s_mul_i32 s48, s47, 6144')
I('v_lshrrev_b32 v8, 2, v1'); I('v_lshlrev_b32 v8, 6, v8'); I('v_lshl_add_u32 v8, v2, 3, v8'); I('v_add_u32 v253, s48, v8'); I(f'v_add_u32 v254, {W2A(0)}, v253')
I('s_add_u32 s48, s42, 13'); I('s_mul_i32 s48, s48, 224'); I('s_add_u32 s48, s48, s43'); I('s_add_u32 s48, s48, s47'); I('s_add_u32 s48, s48, 10'); I('s_mul_i32 s48, s48, 192')
I('v_lshlrev_b32 v8, 3, v1'); I('v_add_u32 v8, s48, v8'); I('v_cmp_gt_u32 vcc, 24, v1'); I('v_mov_b32 v9, s46'); I('s_nop 0'); I('v_cndmask_b32 v255, v9, v8, vcc')
a.label('L_setE')
stamp(2)

F=[]
def fill(*l): F.append(list(l))
def fills(l):
    for t in l: fill(t)
fills(['v_and_b32 v5, 1, v4','v_mul_u32_u24 v5, 48, v5','v_lshrrev_b32 v6, 5, v1','v_lshl_add_u32 v5, v6, 2, v5','v_add_u32 v5, v5, v3',
       'v_mul_u32_u24 v5, 0x300, v5','v_lshl_add_u32 v227, v2, 4, v5',
       'v_lshrrev_b32 v5, 2, v1','v_mul_u32_u24 v5, 0xc0, v5','v_and_b32 v6, 1, v2','v_lshl_add_u32 v5, v6, 4, v5','v_lshrrev_b32 v6, 1, v2',
       'v_mul_u32_u24 v6, 0x60, v6','v_add_u32 v226, v5, v6',
       's_and_b32 s54, s40, 1','s_mul_i32 s54, s54, 18432','s_lshr_b32 s47, s40, 1','s_lshl_b32 s47, s47, 6','s_add_u32 s54, s54, s47'])
fills(['s_mul_i32 s47, s41, 28','s_lshl_b32 s48, s41, 2','s_add_u32 s48, s48, 140','v_and_b32 v5, 31, v1','v_add_u32 v6, s47, v5','v_add_u32 v7, s48, v5',
       'v_cmp_gt_u32 vcc, 28, v5','v_lshrrev_b32 v15, 5, v1','s_and_b32 s44, s40, 1','v_cndmask_b32 v5, v7, v6, vcc'])
fills(pixaddr(5, 231, 230, 6, 7, 8))
fill('s_cmp_lt_u32 s40, 4','s_cselect_b32 s44, 0, s44')
fills([f'v_mul_u32_u24 v8, {6*OS}, v15','v_add_u32 v231, v231, v8',f'v_add_u32 v231, {XB}, v231','v_mul_u32_u24 v8, 0x60, v15','v_add_u32 v230, v230, v8',
       's_lshl_b32 s47, s44, 30','v_or_b32 v230, s47, v230'])
NB_FILL=len(F)
fills(['s_mul_i32 s47, s44, 6144','v_lshl_add_u32 v8, v15, 2, v3','v_lshlrev_b32 v8, 6, v8','v_add_u32 v8, s47, v8','v_and_b32 v9, 1, v4',
       'v_lshlrev_b32 v5, 5, v9','v_lshl_add_u32 v5, v2, 3, v5','v_add_u32 v228, v8, v5',
       'v_and_b32 v5, 1, v2','v_lshlrev_b32 v5, 5, v5','v_lshl_add_u32 v5, v9, 4, v5','v_lshrrev_b32 v6, 1, v2','v_lshl_add_u32 v5, v6, 3, v5',
       'v_add_u32 v229, v8, v5',f'v_add_u32 v229, {W2A(0)}, v229'])
G=['v_mbcnt_lo_u32_b32 v72, -1, 0','v_mbcnt_hi_u32_b32 v72, -1, v72','v_lshrrev_b32 v73, 5, v72',
   'v_bfe_u32 v74, v72, 3, 2','v_lshlrev_b32 v74, 1, v74','v_bfe_u32 v75, v72, 1, 1','v_add_u32 v74, v74, v75','v_bfe_u32 v75, v72, 2, 1','v_cmp_eq_u32 vcc, v75, v73',
   'v_mov_b32 v76, 9','v_and_b32 v75, 1, v72','v_cndmask_b32 v74, v76, v74, vcc','v_lshlrev_b32 v75, 4, v75','v_lshlrev_b32 v75, v75, s98']
for k in range(0,8,2):
    G+=[f'v_cmp_eq_u32 vcc, {k}, v74', f'v_cmp_eq_u32_e64 s[52:53], {k+1}, v74', 's_nop 0', f'v_cndmask_b32 v{232+k}, 0, v75, vcc', f'v_cndmask_b32_e64 v{233+k}, 0, v75, s[52:53]']
fill('s_cmp_eq_u32 s44, 0','s_cselect_b32 s98, 0x3f80, 0')
def ghook(GL):
    def h(k):
        for _ in range(6 if k is not None else 99):
            if GL: I(GL.pop(0))
    return {'g1':h,'pk':lambda: h(None)}
fills(['v_lshlrev_b32 v5, 4, v4','v_lshl_add_u32 v5, v2, 2, v5','v_add_u32 v5, v5, v3','v_lshl_add_u32 v31, v5, 3, s58','v_add_u32 v15, s58, v14',
       f'v_mul_u32_u24 v5, {OS}, v4','v_bfe_u32 v6, v1, 3, 1',f'v_mul_u32_u24 v6, {GS}, v6',f'v_add_u32 v5, {XB+2080}, v5','v_add_u32 v5, v5, v6',
       'v_and_b32 v6, 7, v1','s_lshl_b32 s47, s40, 7','v_lshl_add_u32 v0, v6, 4, v5','v_add_u32 v0, s47, v0','v_lshl_add_u32 v9, v6, 5, v5',
       'v_lshlrev_b32 v8, 5, v6','v_lshl_add_u32 v8, v4, 2, v8',f's_add_u32 s47, s58, {8*OS+2080}','v_add_u32 v8, s47, v8'])
print('fillers',len(F), 'first part',NB_FILL); NF_ALL=len(F)

cls=[(0,0),(2,0),(0,1),(2,1),(2,2)]
tb=lambda p,dq: [0,29,43][dq]+7*p
tid={}
def t_read(g):
    for n,(p,dq) in enumerate(cls):
        tid[g]=I(f'ds_read_b64_tr_b16 v[{176+2*n}:{177+2*n}], v28 offset:{(4*dq-p+2)*192+64*g}')
def t_write(g):
    a.wait_lgkm(tid[g])
    I('s_mov_b64 exec, s[90:91]')
    for n,(p,dq) in enumerate(cls):
        I(f'ds_write_b64 v29, v[{176+2*n}:{177+2*n}] offset:{tb(p,dq)*8+g*32*TCS}')
    I('s_mov_b64 exec, -1')
wid={}
def transpose(g,d):
    src=XS(g); o=176+4*d
    I(f'v_perm_b32 v{o}, v{src+4+d}, v{src+d}, s56'); I(f'v_perm_b32 v{o+1}, v{src+12+d}, v{src+8+d}, s56')
    I(f'v_perm_b32 v{o+2}, v{src+4+d}, v{src+d}, s57'); I(f'v_perm_b32 v{o+3}, v{src+12+d}, v{src+8+d}, s57')
    I('s_mov_b32 exec_hi, 0x3ffff')
    for h in range(2):
        wid[g]=I(f'ds_write_b64 v30, v[{o+2*h}:{o+2*h+1}] offset:{g*4*OS+d*1600+h*160}')
    I('s_mov_b32 exec_hi, -1')
a.wait_vm(dwid); a.wait_all(vm=False)
t_read(0); t_write(0)
stamp(3)
a.wait_vm(xid[0])
for d in range(4): transpose(0,d)
xload(2)
a.wait_all(vm=False)
I('s_barrier')
stamp(4)

def dma(lds, src, w):
    I(f's_add_u32 m0, s55, {u32(lds)}')
    if w==1:
        I(f's_add_u32 s52, s54, {u32(src)}'); return I('buffer_load_dwordx4 v227, s[24:27], s52 offen lds')
    I(f's_add_u32 s52, s55, {u32(src)}'); return I('buffer_load_dwordx4 v226, s[28:31], s52 offen lds')
NB=6
RING=[32+8*k for k in range(NB)]
DREG=lambda g,e: 80+16*g+4*e
steps=[(g,e,m) for g in range(3) for e in range(4) for m in range(4)]
ids={}
def conv_rB(n):
    g,e,m=steps[n]; r=RING[n%NB]
    I(f'ds_read_b128 v[{r+4}:{r+7}], v{BA[m]} offset:{g*4*OS+(e>>1)*1600+(e&1)*160+BOFF[m]}')
def conv_rA(n):
    g,e,m=steps[n]; r=RING[n%NB]
    ao=(g*32+e)*TCS
    I(f'ds_read_b64 v[{r}:{r+1}], v{AA[(m,0)]} offset:{ao+AOFF[(m,0)]}')
    ids[n]=I(f'ds_read_b64 v[{r+2}:{r+3}], v{AA[(m,1)]} offset:{ao+AOFF[(m,1)]}')
SR=192; QR=196
def stats(g):
    L=[]
    for e in range(4):
        for p in range(4):
            d=DREG(g,e)+p
            if g==0 and e==0: L.append(f'v_mul_f32 v{QR+p}, v{d}, v{d}')
            else: L.append(f'v_fmac_f32 v{QR+p}, v{d}, v{d}')
            if g==0 and e==0: pass
            elif g==0 and e==1: L.append(f'v_add_f32 v{SR+p}, v{d-4}, v{d}')
            else: L.append(f'v_add_f32 v{SR+p}, v{SR+p}, v{d}')
    return L
extras={n:[] for n in range(48)}
pre={}
xres=[]; pf=[]
for g in range(2):
    b=16*g
    extras[b+0].append(lambda g=g: t_read(g+1))
    extras[b+2].append(lambda g=g: t_write(g+1))
    extras[b+7].append(lambda g=g: a.wait_vm(xid[g+1]))
    for d in range(4): extras[b+7+d].append(lambda g=g,d=d: transpose(g+1,d))
    pre[b+12]=lambda g=g: (a.wait_lgkm(wid[g+1]), I('s_barrier'))
for k in range(3): extras[16+4+k].append(lambda k=k: pf.append(dma(1024*k, 6144*k, 1)))
for k in range(6): extras[38+k].append(lambda k=k: xres.append(I(f'buffer_load_dwordx4 v[{200+4*k}:{203+4*k}], v230, s[16:19], 0 offen offset:{16*k}')))
LEAD=4
for n in range(LEAD): conv_rB(n); conv_rA(n)
st=[]
for n,(g,e,m) in enumerate(steps):
    if n in pre: pre[n]()
    if n+LEAD<len(steps): conv_rB(n+LEAD)
    a.wait_lgkm(ids[n])
    r=RING[n%NB]; d=DREG(g,e)
    I(f'v_mfma_f32_16x16x32_bf16 v[{d}:{d+3}], v[{r}:{r+3}], v[{r+4}:{r+7}], '+('0' if m==0 else f'v[{d}:{d+3}]'))
    if n+LEAD<len(steps): conv_rA(n+LEAD)
    for f in extras[n]: f()
    if n in (17,33): st+=stats(g-1)
    busy=bool(extras[n]) and not (n>=32)
    nf=0 if busy else 3
    if n>=16:
        for _ in range(2 if busy else 3):
            if st: I(st.pop(0))
        nf=0 if busy else (2 if n<32 else 3)
    for _ in range(nf):
        if F:
            for t in F.pop(0): I(t)
    if n==19: assert NF_ALL-len(F)>=19
    if n==37: assert NF_ALL-len(F)>=NB_FILL
assert not st
print('fillers left after conv',len(F))
stamp(5)
for f in F:
    for t in f: I(t)
for e in range(4):
    d=DREG(2,e)
    for h in (0,2):
        I(f'v_pk_add_f32 v[{SR+h}:{SR+h+1}], v[{SR+h}:{SR+h+1}], v[{d+h}:{d+h+1}]')
        I(f'v_pk_fma_f32 v[{QR+h}:{QR+h+1}], v[{d+h}:{d+h+1}], v[{d+h}:{d+h+1}], v[{QR+h}:{QR+h+1}]')
I(f'ds_write_b128 v15, v[{SR}:{SR+3}] offset:2080')
I(f'ds_write_b128 v15, v[{QR}:{QR+3}] offset:{4*OS+2080}')
a.wait_all(vm=False)
I('s_barrier')
stamp(6)
I('ds_read_b128 v[32:35], v0'); r1=I(f'ds_read_b128 v[36:39], v0 offset:{4*OS}')
e1=[dma(W1A(4)+1024*k, 256+6144*k, 1) for k in range(3)]
a.wait_lgkm(r1)
for x,y in ((32,34),(33,35),(36,38),(37,39)): I(f'v_permlane32_swap_b32 v{x}, v{y}')
for x,y in ((32,34),(33,35),(36,38),(37,39)): I(f'v_add_f32 v{x}, v{x}, v{y}')
I('v_permlane16_swap_b32 v32, v33'); I('v_permlane16_swap_b32 v36, v37')
I('v_add_f32 v32, v32, v33'); I('v_add_f32 v36, v36, v37')
I('v_add_f32_dpp v32, v32, v32 row_ror:8 row_mask:0xf bank_mask:0xf'); I('v_add_f32_dpp v36, v36, v36 row_ror:8 row_mask:0xf bank_mask:0xf')
I(f'v_mul_f32 v32, {f32(1/96.)}, v32')
I(f'v_mul_f32 v36, {f32(1/96.)}, v36')
I('v_fma_f32 v36, -v32, v32, v36')
I('v_max_f32 v36, 0, v36')
I(f'v_add_f32 v36, {f32(1e-5)}, v36')
I('v_rsq_f32 v36, v36')
I(f'v_mul_f32 v36, {f32(SC)}, v36')
I('v_mul_f32 v32, v32, v36'); I('v_sub_f32 v32, 0, v32')
I('ds_write2_b32 v8, v36, v32 offset0:0 offset1:4')
a.wait_all(vm=False)
I('s_barrier')
I(f'ds_read_b128 v[40:43], v9 offset:{8*OS}'); r2=I(f'ds_read_b128 v[44:47], v9 offset:{8*OS+16}')
e2=[dma(W2A(0)+1024*k, 32*k, 2) for k in range(3)]
I(f's_mov_b32 s92, {f32(-K1/SC)}'); I('s_mov_b32 s93, s92'); I(f's_mov_b32 s94, {f32(SC)}'); I('s_mov_b32 s95, s94')
I('v_mov_b32 v224, s92'); I('v_mov_b32 v225, s94')
a.wait_lgkm(r2)
for g in range(3):
    for e in range(4):
        d=DREG(g,e)
        for h in (0,2): I(f'v_pk_fma_f32 v[{d+h}:{d+h+1}], v[{d+h}:{d+h+1}], v[{40+h}:{41+h}], v[{44+h}:{45+h}]')
    d=DREG(g,0)
    for p in range(4):
        o=48+8*g+2*p
        I(f'v_cvt_pk_bf16_f32 v{o}, v{d+p}, v{d+4+p}'); I(f'v_cvt_pk_bf16_f32 v{o+1}, v{d+8+p}, v{d+12+p}')
        I(f'ds_write_b64 v31, v[{o}:{o+1}] offset:{g*4*OS+p*520}')
a.wait_vm(pf[2])
a.wait_all(vm=False)
I('s_barrier')
stamp(7)

H0=0; F1=24; F2=48; ACC=72; AS=120; TS=168; YB=216; HL=240
hid=[]
for s in range(6):
    I(f'ds_read_b64 v[{4*s}:{4*s+1}], v231 offset:{s*OS}')
    hid.append(I(f'ds_read_b64 v[{4*s+2}:{4*s+3}], v231 offset:{s*OS+GS}'))
base={228:0, 229:W2A(0), 253:0, 254:0}
def rel(reg, ab):
    d=ab-base[reg]
    if d<0 or d>59000:
        I(f'v_add_u32 v{reg}, {u32(d)}, v{reg}'); base[reg]=ab; d=0
    return d
def trread(reg, addr, off, d2=512):
    I(f'ds_read_b64_tr_b16 v[{reg}:{reg+1}], v{addr} offset:{off}')
    return I(f'ds_read_b64_tr_b16 v[{reg+2}:{reg+3}], v{addr} offset:{off+d2}')
fid={}
for k in range(6): fid[('1',k)]=trread(F1+4*k,228,k*1024)

class U: pass
def unitM(idx, f1, f2):
    u=U(); u.k='M'; u.A=[AS+16*(idx%3)+k for k in range(16)]; u.T=[TS+16*(idx%3)+k for k in range(16)]
    u.f1=f1; u.f2=f2; u.Y=[YB+k for k in range(8)]
    return u
def unitL():
    u=U(); u.k='L'; u.A=[AS+k for k in range(16)]+[H0+k for k in range(8)]; u.T=[TS+k for k in range(16)]+[H0+8+k for k in range(8)]
    u.Y=[212+k for k in range(12)]
    return u
ACCL=136
G2LF=[F1+4*k for k in range(6)]+[184+4*k for k in range(4)]+[160,164]+[F2+4*k for k in range(6)]
def f1L(n):
    t,ks=divmod(n,3); cc,hh=divmod(t,2)
    if n==6: I(f'v_add_u32 v253, {EB}, v253')
    if n==12: I('v_add_u32 v253, s96, v253')
    fid[('1L',n)]=trread(F1+4*(n%6), 253, 2*ks*1024+hh*32, 1024)
def f2L(n):
    cc,r=divmod(n,6); o,hh=divmod(r,2)
    if n==12: I(f'v_add_u32 v254, {u32(W2A(4)-W2A(0))}, v254')
    fid[('2L',n)]=trread(G2LF[n], 254, (24576 if cc==2 else 0)+o*1024+hh*32, 3072)

def iteration(units, i, bar=True, hooks=None, last=False):
    hooks=hooks or {}
    N=len(units)
    g=lambda c: units[c] if 0<=c<N else None
    u1,ue,ur,u2=g(i+2),g(i+1),g(i),g(i-1)
    fill=[]
    if u2:
        for k,y in enumerate(u2.Y): fill.append((f'v_cvt_pk_bf16_f32 v{y}, v{u2.T[2*k]}, v{u2.T[2*k+1]}',4))
    tr=[]
    if ue: tr.append([f'v_exp_f32 v{r}, v{r}' for r in ue.T])
    if ur: tr.append([f'v_rcp_f32 v{r}, v{r}' for r in ur.T])
    for k in range(24):
        for l in tr:
            if k<len(l): fill.append((l[k],8))
    def filler(budget):
        while fill and budget>=fill[0][1]:
            t,c=fill.pop(0); I(t); budget-=c
    def flush_cvt():
        while fill and 'cvt' in fill[0][0]: I(fill.pop(0)[0])
    if bar: I('s_barrier')
    if 'start' in hooks: hooks['start']()
    nxt=g(i+3)
    def g1m(k):
        if k==0: a.wait_lgkm(fid[('1',5)])
        A_=u1.A[0]
        I(f'v_mfma_f32_32x32x16_bf16 v[{A_}:{A_+15}], v[{F1+4*k}:{F1+4*k+3}], v[{H0+4*k}:{H0+4*k+3}], '+('0' if k==0 else f'v[{A_}:{A_+15}]'))
        if nxt and nxt.k=='M': fid[('1',k)]=trread(F1+4*k,228,rel(228,nxt.f1)+k*1024)
        elif nxt: f1L(k)
        if 'g1' in hooks: hooks['g1'](k)
        filler(24)
    def g1l(n):
        t,ks=divmod(n,3); D=u1.A[4*t]
        if n%6==0: a.wait_lgkm(fid[('1L',n+5)])
        r=F1+4*(n%6)
        I(f'v_mfma_f32_16x16x32_bf16 v[{D}:{D+3}], v[{r}:{r+3}], v[{HL+4*ks}:{HL+4*ks+3}], '+('0' if ks==0 else f'v[{D}:{D+3}]'))
        if n+6<18: f1L(n+6)
        filler(8)
    order=[0,3,1,4,2,5] if last else [0,1,2,3,4,5]
    def g2m(kk):
        k=order[kk]; s2,o=divmod(k,3); C=ACC+16*o
        if kk==0: a.wait_lgkm(fid[('2',5)]); flush_cvt()
        I(f'v_mfma_f32_32x32x16_bf16 v[{C}:{C+15}], v[{F2+4*k}:{F2+4*k+3}], v[{u2.Y[4*s2]}:{u2.Y[4*s2+3]}], v[{C}:{C+15}]')
        if ur and ur.k=='M': fid[('2',k)]=trread(F2+4*k,229,rel(229,ur.f2)+k*1024)
        elif ur: f2L(12+k)
        if 'g2' in hooks: hooks['g2'](kk)
        filler(24)
    def gid(k):
        o,s2=divmod(k,2); C=ACC+16*o; X=200+8*o+4*s2
        I(f'v_mfma_f32_32x32x16_bf16 v[{C}:{C+15}], v[{232+4*s2}:{235+4*s2}], v[{X}:{X+3}], '+('0' if s2==0 else f'v[{C}:{C+15}]'))
        fid[('2',k)]=trread(F2+4*k,229,rel(229,ur.f2)+k*1024)
        filler(24)
    def g2l(n):
        cc,r=divmod(n,6); D=ACCL+4*r; F_=G2LF[n]
        if n==0: flush_cvt()
        if n%6==0: a.wait_lgkm(fid[('2L',n+5)])
        I(f'v_mfma_f32_16x16x32_bf16 v[{D}:{D+3}], v[{F_}:{F_+3}], v[{u2.Y[4*cc]}:{u2.Y[4*cc+3]}], '+('0' if cc==0 else f'v[{D}:{D+3}]'))
        filler(8)
    if u1 and u1.k=='L':
        for n in range(6): g1l(n)
        for k in range(3): g2m(k)
        for n in range(6,12): g1l(n)
        for k in range(3,6): g2m(k)
        for n in range(12,18): g1l(n)
    else:
        if u1:
            for k in range(6): g1m(k)
        if i==0:
            for k in range(6): gid(k)
        elif u2 and u2.k=='M':
            for k in range(6): g2m(k)
        elif u2:
            for n in range(18): g2l(n)
    filler(10**6)
    if 'pk' in hooks: hooks['pk']()
    def pk_r():
        for k in range(0,len(ur.A),2):
            A_,T_=ur.A[k],ur.T[k]
            I(f'v_pk_mul_f32 v[{T_}:{T_+1}], v[{A_}:{A_+1}], v[{T_}:{T_+1}]')
    def pk_e():
        for k in range(0,len(ue.T),2):
            T_=ue.T[k]
            if 'V' in DBG: I(f'v_pk_fma_f32 v[{T_}:{T_+1}], v[{T_}:{T_+1}], v[224:225], v[224:225] op_sel:[0,1,1]')
            else: I(f'v_pk_fma_f32 v[{T_}:{T_+1}], v[{T_}:{T_+1}], s[94:95], s[94:95]')
    def pk_1():
        for k in range(0,len(u1.A),2):
            A_,T_=u1.A[k],u1.T[k]
            if 'V' in DBG: I(f'v_pk_fma_f32 v[{T_}:{T_+1}], v[{A_}:{A_+1}], v[{A_}:{A_+1}], v[224:225] op_sel_hi:[1,1,0] neg_lo:[1,0,0] neg_hi:[1,0,0]')
            else: I(f'v_pk_fma_f32 v[{T_}:{T_+1}], v[{A_}:{A_+1}], v[{A_}:{A_+1}], s[92:93] neg_lo:[1,0,0] neg_hi:[1,0,0]')
        for k in range(0,len(u1.A),2):
            A_,T_=u1.A[k],u1.T[k]
            I(f'v_pk_mul_f32 v[{T_}:{T_+1}], v[{A_}:{A_+1}], v[{T_}:{T_+1}]')
    seq=[(u1,pk_1),(ue,pk_e),(ur,pk_r)]
    if 'O' not in DBG: seq=seq[::-1]
    for u,f in seq:
        if u: f()
    if 'end' in hooks: hooks['end']()

I('s_cmp_ge_u32 s40, 4'); I('s_cbranch_scc1 L_B')
state0=(list(a.hist), list(a.lq), list(a.vq), dict(base), dict(fid))
e3=[dma(W1A(8)+1024*k, 512+6144*k, 1) for k in range(3)]
unitsA=[unitM(c,W1A(c),W2A(c)) for c in range(12)]
I('s_movk_i32 s96, 0x4800'); I(f's_mov_b32 s97, {u32(W2A(4)-W2A(1))}')
iteration(unitsA,-2,bar=False,hooks=ghook(list(G)))
stamp(8)
a.wait_vm(e1[2])
iteration(unitsA,-1)
a.wait_all(lgkm=False)
iteration(unitsA,0,hooks={'pk':lambda: rel(228,EB)})
I('s_mov_b32 s58, 0')
a.label('L_loop')
n0=len(a.lines)
def bump():
    I('v_add_u32 v228, s96, v228'); I('v_add_u32 v229, s97, v229')
    I(f's_mov_b32 s96, {u32(RB-EB-18432)}'); I('s_movk_i32 s97, 0x4800')
unitsX=unitsA+[unitM(12,RB+2*6144,0)]
for i in (1,2,3): iteration(unitsX,i,hooks={'pk':bump} if i==3 else None)
I('s_add_u32 s58, s58, 1'); I('s_cmp_lt_u32 s58, 3'); I('s_cbranch_scc1 L_loop')
save=list(a.lines)
body1=a.lines[n0:]
for ps,(b1,b2) in enumerate(((W1A(7),W2A(4)-6144),(W1A(10),W2A(7)-6144))):
    n1=len(a.lines)
    base[228]=b1; base[229]=b2
    for i in (4+3*ps,5+3*ps,6+3*ps): iteration(unitsX,i,hooks={'pk':bump} if i%3==0 else None)
    body2=a.lines[n1:]
    assert body2==body1[:len(body2)], "loop body differs on later pass"
a.lines=save
base[229]=W2A(10)-6144
stamp(9)
iteration(unitsA,10,bar=False); iteration(unitsA,11,bar=False)
stamp(10)
def epiA(kk):
    if kk in (3,5,7):
        o=(kk-3)//2; C=ACC+16*o; O=AS+8*o
        for k in range(8): I(f'v_cvt_pk_bf16_f32 v{O+k}, v{C+2*k}, v{C+2*k+1}')
        I(f'ds_write_b128 v240, v[{O}:{O+3}] offset:{32*o}')
        I(f'ds_write_b128 v240, v[{O+4}:{O+7}] offset:{32*o+16}')
iteration(unitsA,12,bar=False,hooks={'g2':epiA},last=True)
epiA(7)
I('s_mov_b32 s47, 43008')
rd=[I(f'ds_read_b128 v[{TS+4*j}:{TS+4*j+3}], v241 offset:{896*j}') for j in range(7)]
for j in range(7):
    a.wait_lgkm(rd[j])
    if j<6: I(f'buffer_store_dwordx4 v[{TS+4*j}:{TS+4*j+3}], v242, s[32:35], {"s47" if j>=3 else "0"} offen offset:{896*(j%3)}')
    else: I(f'buffer_store_dwordx4 v[{TS+4*j}:{TS+4*j+3}], v243, s[32:35], 0 offen')
stamp(11)
final_stamps()
I('s_endpgm')

a.label('L_B')
a.hist,a.lq,a.vq=list(state0[0]),list(state0[1]),list(state0[2]); base.update(state0[3]); fid.clear(); fid.update(state0[4])
for s in range(6):
    hl=I(f'ds_read_b64 v[{HL+2*s}:{HL+2*s+1}], v252 offset:{s*OS}')
I('s_and_b32 s47, s40, 3'); I('s_and_b32 s49, s47, 1')
I('s_movk_i32 s96, 0x6000')
I('s_cmp_ge_u32 s47, 2'); I(f's_cmov_b32 s96, {u32(RB-EB-12288)}')
LATE=[(1,10),(2,4),(2,6),(2,8),(2,10)]
dm={}
def dma_late(P,k):
    w,c=LATE[P]
    if w==1: dm[(P,k)]=dma(W1A(c)-12288+1024*k, c*64-128+6144*k, 1)
    else: dm[(P,k)]=dma(W2A(c)-12288+1024*k, c*6144-12288+32*k, 2)
unitsB=[unitM(u,W1A(2*u),W2A(2*u)) for u in range(6)]+[unitL()]
PB=lambda pr: EB if pr==0 else 0
EXL=EB+24576
def exch_write():
    I('v_mbcnt_lo_u32_b32 v228, -1, 0'); I('v_mbcnt_hi_u32_b32 v228, -1, v228')
    I('v_lshlrev_b32 v229, 4, v228')
    I('s_cmp_lt_u32 s47, 2'); I(f's_cselect_b32 s52, {EB}, 0')
    I('s_mul_i32 s53, s49, 12288'); I('s_add_u32 s53, s53, s52')
    I('v_and_b32 v230, 31, v228'); I('v_mul_u32_u24 v230, 0xc0, v230'); I('v_lshrrev_b32 v231, 5, v228'); I('v_mul_u32_u24 v231, 0x60, v231')
    I('v_add3_u32 v231, v230, v231, s53')
    for o in range(3):
        for rq in range(4):
            C=ACC+16*o+4*rq
            I(f'ds_write_b128 v231, v[{C}:{C+3}] offset:{(rq&1)*6144+(2*o+(rq>>1))*16}')
    global xl
    xl=I('buffer_load_dwordx2 v[232:233], v255, s[16:19], 0 offen')
    I('s_mul_i32 s53, s49, 2688'); I('s_add_u32 s53, s53, s52'); I('v_add_u32 v252, s53, v229')
    I('v_add_u32 v253, s52, v229')
    outaddr(229,234,235,230,52,53)
    I('s_mul_i32 s48, s49, 43008')
for j in range(-2,8):
    if j==-1: a.wait_vm(e1[2]); a.wait_lgkm(hl)
    if j==0: a.wait_vm(e2[2])
    if j==2: a.wait_vm(dm[(1,2)])
    if j in (3,4,5): a.wait_vm(dm[(j-1,2)])
    hooks={}
    if j==-2: hooks=ghook(list(G))
    if j in (-1,0): hooks['g1']=(lambda kk,j=j: dma_late(2*(j+1)+kk//3, kk%3))
    if j==1: hooks['g1']=(lambda kk: dma_late(4,kk) if kk<3 else None)
    if j==5: hooks['g2']=lambda kk: f2L(kk)
    if j==6: hooks['g2']=lambda kk: f2L(6+kk)
    if j==7: hooks['start']=exch_write
    iteration(unitsB,j,bar=(j>-2),hooks=hooks)
    if j==-2: stamp(8)
    if j==0: stamp(9)
stamp(10)
I('v_and_b32 v0, 15, v228'); I('v_mul_u32_u24 v1, 0x180, v0'); I('v_lshrrev_b32 v2, 4, v228'); I('v_lshl_add_u32 v1, v2, 4, v1')
I('s_mul_i32 s52, s47, 1536'); I(f's_add_u32 s52, s52, {EXL}'); I('v_add_u32 v1, s52, v1')
I('s_mov_b32 exec_lo, 0x000f000f'); I('s_mov_b32 exec_hi, 0x000f000f')
for r in range(6):
    o,hh=divmod(r,2)
    I(f'ds_write_b128 v1, v[{ACCL+4*r}:{ACCL+4*r+3}] offset:{(48*hh+16*o)*4}')
I('s_mov_b64 exec, -1')
I('s_mul_i32 s52, s47, 384'); I(f's_add_u32 s52, s52, {EXL}'); I('v_min_u32 v2, 23, v228'); I('v_lshlrev_b32 v2, 4, v2'); I('v_add_u32 v2, s52, v2')
a.wait_all(vm=False)
I('s_barrier')
def rd4(reg, addr, off):
    for q in range(4):
        r=I(f'ds_read_b128 v[{reg+4*q}:{reg+4*q+3}], v{addr} offset:{off+(q>>1)*12288+(q&1)*6144}')
    return r
def fin(reg, out):
    for k in range(0,8,2): I(f'v_pk_add_f32 v[{reg+k}:{reg+k+1}], v[{reg+k}:{reg+k+1}], v[{reg+8+k}:{reg+9+k}]')
    for k in range(4): I(f'v_cvt_pk_bf16_f32 v{out+k}, v{reg+2*k}, v{reg+2*k+1}')
rd=[rd4(ACC+16*j,252,896*j) for j in range(3)]
rl=[I(f'ds_read_b128 v[{TS+4*k}:{TS+4*k+3}], v2 offset:{1536*k}') for k in range(4)]
for j in range(3):
    a.wait_lgkm(rd[j]); fin(ACC+16*j, 4+4*j)
    I(f'buffer_store_dwordx4 v[{4+4*j}:{7+4*j}], v234, s[32:35], s48 offen offset:{896*j}')
a.wait_lgkm(rl[3]); a.wait_vm(xl)
I('v_lshlrev_b32 v16, 16, v232'); I('v_and_b32 v17, 0xffff0000, v232'); I('v_lshlrev_b32 v18, 16, v233'); I('v_and_b32 v19, 0xffff0000, v233')
for w in range(4):
    for k in (0,2): I(f'v_pk_add_f32 v[{16+k}:{17+k}], v[{16+k}:{17+k}], v[{TS+4*w+k}:{TS+4*w+k+1}]')
I('v_cvt_pk_bf16_f32 v20, v16, v17'); I('v_cvt_pk_bf16_f32 v21, v18, v19')
I('buffer_store_dwordx2 v[20:21], v255, s[32:35], 0 offen')
I('s_cmp_lg_u32 s49, 0'); I('s_cbranch_scc1 L_bd')
r=rd4(AS,253,5376); a.wait_lgkm(r); fin(AS,24)
I('buffer_store_dwordx4 v[24:27], v235, s[32:35], 0 offen')
a.label('L_bd')
I('s_barrier')
stamp(11)
final_stamps()
a.label('L_end')

hdr=open('cdna_kernels/'+NAME+'.s.ref').read().split('\n')
top=[l for l in hdr if l.startswith(';') and '@launch' not in l and not l.startswith('; Override') and not l.startswith('; grid=')]
out='\n'.join(top)+f'\n; @launch grid=(256,1,1) block=(512,1,1) lds={LDSB}\n'
out+=f'''.amdgcn_target "amdgcn-amd-amdhsa--gfx950"
.text
.globl {NAME}_kernel
.p2align 8
.type {NAME}_kernel,@function
{NAME}_kernel:
'''+a.text()+f'''s_endpgm
.section .rodata,"a"
.p2align 6
.amdhsa_kernel {NAME}_kernel
  .amdhsa_next_free_vgpr 256
  .amdhsa_next_free_sgpr 102
  .amdhsa_accum_offset 256
  .amdhsa_group_segment_fixed_size 0
  .amdhsa_kernarg_size 56
  .amdhsa_user_sgpr_count 2
  .amdhsa_user_sgpr_kernarg_segment_ptr 1
  .amdhsa_system_sgpr_workgroup_id_x 1
.end_amdhsa_kernel
'''
open(sys.argv[1],'w').write(out)
print('nops inserted:',a.nops, 'instrs', len(a.hist))
if 'v' in DBG or len(sys.argv)>3:
    for r,t in a.noplog: print('  nop',r,'before',t)
```
